```python
import torch

def _softmax(x, axis=-1):
    return torch.softmax(x, dim=axis)
def _gelu(x):
    return torch.nn.functional.gelu(x, approximate="tanh")
def _silu(x):
    return torch.nn.functional.silu(x)
def _sigmoid(x):
    return torch.sigmoid(x)
def _layernorm(x, axis=-1, eps=1e-5):
    m = x.mean(dim=axis, keepdim=True)
    v = x.var(dim=axis, keepdim=True, unbiased=False)
    return (x - m) / torch.sqrt(v + eps)
def _scatter_add(tgt, idx, src, axis=0):
    return tgt.clone().index_add_(axis, idx, src)
def _segment_sum(src, seg, n):
    out = torch.zeros((n,) + src.shape[1:], dtype=src.dtype)
    return out.index_add_(0, seg, src)
def _pad(x, pw):
    flat = tuple(v for pair in reversed(pw) for v in pair)
    return torch.nn.functional.pad(x, flat)

kernel_name = 'gated_mix__gqa_block_cached__dense_activation_relu__decode'

def setup_inputs():

    _w = (lambda a: (lambda t: t.to(torch.bfloat16) if t.is_floating_point() else t)(torch.as_tensor(a)))
    def _A_setup():
        B, Sq, D = 4, 1, 448
        Hq, Hkv, Sk, Dh = 16, 8, 4096, 256
        assert Hq % Hkv == 0, (Hq, Hkv)
        return {
            "x": _w((lambda *s: torch.randn(*s, dtype=torch.bfloat16) * 0.05)(B, Sq, D)),
            "k_cache": _w((lambda *s: torch.randn(*s, dtype=torch.bfloat16) * 6.4)(B, Hkv, Sk, Dh)),
            "v_cache": _w((lambda *s: torch.randn(*s, dtype=torch.bfloat16) * 0.4)(B, Hkv, Sk, Dh)),
            "wq": _w((lambda *s: torch.randn(*s, dtype=torch.bfloat16) * 6.4)(D, Hq * Dh) * (D ** -0.5)),
            "wo": _w((lambda *s: torch.randn(*s, dtype=torch.bfloat16) * 0.4)(Hq * Dh, D) * ((Hq * Dh) ** -0.5)),
        }
    _A_in = _A_setup()

    def _B_setup():
        B, S, D, Dff = 4, 1, 448, 1792
        return {
            "x": _w((lambda *s: torch.randn(*s, dtype=torch.bfloat16) * 0.05)(B, S, D)),
            "w1": _w((lambda *s: torch.randn(*s, dtype=torch.bfloat16) * 0.05)(D, Dff)),
            "w2": _w((lambda *s: torch.randn(*s, dtype=torch.bfloat16) * 0.05)(Dff, D)),
        }
    _B_in = _B_setup()

    return {
        "A_x": _A_in["x"],
        "A_k_cache": _A_in["k_cache"],
        "A_v_cache": _A_in["v_cache"],
        "A_wq": _A_in["wq"],
        "A_wo": _A_in["wo"],
        "B_x": _B_in["x"],
        "B_w1": _B_in["w1"],
        "B_w2": _B_in["w2"],
        "gate_w": _w((lambda *s: torch.randn(*s, dtype=torch.bfloat16) * 0.05)(448) * 16.0),
    }

def reference(A_x, A_k_cache, A_v_cache, A_wq, A_wo, B_x, B_w1, B_w2, gate_w):
    def _A_ref(x, k_cache, v_cache, wq, wo):
        B, Sq, D = x.shape
        Hq, Dh = 16, 256
        Hkv = k_cache.shape[1]
        rep = Hq // Hkv
        q = (lambda x, *d: x.permute(*d))((x @ wq).reshape(B, Sq, Hq, Dh), 0, 2, 1, 3)
        k = (lambda x, n, axis: torch.repeat_interleave(x, n, dim=axis))(k_cache, rep, axis=1)
        v = (lambda x, n, axis: torch.repeat_interleave(x, n, dim=axis))(v_cache, rep, axis=1)
        scores = torch.einsum("bhqd,bhkd->bhqk", q, k) * (Dh ** -0.5)
        p = _softmax(scores, axis=-1)
        o = torch.einsum("bhqk,bhkd->bhqd", p, v)
        return (lambda x, *d: x.permute(*d))(o, 0, 2, 1, 3).reshape(B, Sq, Hq * Dh) @ wo

    def _B_ref(x, w1, w2):
        h = torch.einsum("bsd,df->bsf", x, w1)
        zero = torch.zeros_like(h)
        h = torch.maximum(h, zero)
        return torch.einsum("bsf,fd->bsd", h, w2)

    x = A_x
    g = _sigmoid((x * gate_w).sum(-1, keepdims=True))
    a = _A_ref(x, A_k_cache, A_v_cache, A_wq, A_wo)
    b = _B_ref(x, B_w1, B_w2)
    return g * a + (1 - g) * b
```

```python
import re

REG_RE = re.compile(r'(?<![\w.])([vas])\[(\d+):(\d+)\]|(?<![\w.])([vas])(\d+)(?![\w\[])|(?<![\w.])(vcc|exec|m0)(?![\w])')

def regs_of(tok):
    out = set()
    for m in REG_RE.finditer(tok):
        if m.group(1):
            out |= {(m.group(1), i) for i in range(int(m.group(2)), int(m.group(3)) + 1)}
        elif m.group(4):
            out.add((m.group(4), int(m.group(5))))
        else:
            out.add((m.group(6), 0))
    return out

NO_DST_S = ("s_cmp", "s_cbranch", "s_waitcnt", "s_barrier", "s_nop", "s_branch", "s_endpgm", "s_setprio", "s_sleep", "s_bitcmp")
TRANS = ("v_exp_f32", "v_log_f32", "v_rcp_f32", "v_rsq_f32", "v_sqrt_f32", "v_sin_f32", "v_cos_f32")

class Ins:
    def __init__(self, text):
        self.text = text
        body = text.split(";")[0].strip()
        self.label = body.endswith(":")
        self.op = body.split()[0] if body else ""
        rest = body[len(self.op):].strip()
        self.ops = [o.strip() for o in rest.split(",")] if rest else []
        op = self.op
        self.is_mfma = op.startswith("v_mfma")
        self.is_valu = op.startswith("v_") and not self.is_mfma
        self.is_trans = any(op.startswith(t) for t in TRANS)
        self.is_ds = op.startswith("ds_")
        self.is_vmem = op.startswith("buffer_") or op.startswith("global_")
        self.is_salu = op.startswith("s_")
        self.is_dpp = ("row_" in body and "row_mask" in body) or "quad_perm" in body
        self.is_lds_dma = self.is_vmem and re.search(r'\blds\b', body) is not None
        self.is_branch = op.startswith("s_cbranch") or op == "s_branch"
        self.target = self.ops[0] if self.is_branch else None
        w, r = set(), set()
        allops = [regs_of(o) for o in self.ops]
        if self.label or not op:
            pass
        elif self.is_mfma:
            w = allops[0]; r = allops[1] | allops[2] | allops[3]
            self.srcc = allops[3]; self.srcab = allops[1] | allops[2]
        elif op.startswith("v_permlane") and "swap" in op:
            w = allops[0] | allops[1]; r = set(w)
        elif op.startswith("v_cmp"):
            w = allops[0]; r = set().union(*allops[1:])
        elif self.is_valu:
            w = allops[0]; r = set().union(*allops[1:]) if len(allops) > 1 else set()
            if op.startswith("v_fmac") or op.startswith("v_writelane") or self.is_dpp:
                r |= w
            if op.startswith("v_cndmask") and len(self.ops) == 3:
                r.add(("vcc", 0))
        elif self.is_ds:
            if op.startswith("ds_read"):
                w = allops[0]; r = set().union(*allops[1:])
            else:
                r = set().union(*allops)
        elif self.is_vmem:
            if "load" in op and not self.is_lds_dma:
                w = allops[0]; r = set().union(*allops[1:])
            else:
                r = set().union(*allops)
            if self.is_lds_dma:
                r.add(("m0", 0))
        elif self.is_salu:
            if any(op.startswith(p) for p in NO_DST_S):
                r = set().union(*allops) if allops else set()
            else:
                w = allops[0]; r = set().union(*allops[1:]) if len(allops) > 1 else set()
            if op in ("s_cbranch_vccz", "s_cbranch_vccnz"):
                r.add(("vcc", 0))
        self.w, self.r = w, r
        self.states = 1
        if op == "s_nop":
            self.states = int(self.ops[0], 0) + 1
        self.wide_store = self.is_vmem and "store" in op and ("x4" in op or "x3" in op)

def need(prod, cons):
    n = 0
    pw = prod.w
    if prod.is_valu:
        vw = {x for x in pw if x[0] in "va"}
        sw = {x for x in pw if x[0] == "s" or x[0] == "vcc"}
        if cons.is_mfma and vw & cons.r: n = max(n, 2)
        if cons.is_valu and vw & cons.r:
            if cons.op.startswith("v_readlane") or cons.op.startswith("v_readfirstlane"): n = max(n, 1)
            if cons.op.startswith("v_permlane"): n = max(n, 2)
            if cons.is_dpp: n = max(n, 2)
            if prod.is_trans: n = max(n, 1)
        if cons.is_mfma and prod.is_trans and vw & cons.r: n = max(n, 2)
        if sw:
            if cons.is_valu and sw & cons.r:
                n = max(n, 4 if (cons.op.startswith("v_readlane") or cons.op.startswith("v_writelane")) else 2)
            if cons.is_vmem and sw & cons.r: n = max(n, 5)
            if cons.is_mfma and sw & cons.r: n = max(n, 2)
    if prod.is_mfma:
        d = pw
        if cons.is_mfma:
            if d & cons.srcab: n = max(n, 8)
            if d & cons.srcc and cons.srcc != d: n = max(n, 6)
            if d & cons.w and cons.w != d: n = max(n, 6)
        elif cons.is_valu or cons.is_ds or cons.is_vmem:
            if d & (cons.r | cons.w): n = max(n, 8)
        if cons.is_valu and prod.srcc & cons.w: n = max(n, 3)
    if prod.is_salu and ("m0", 0) in pw and cons.is_lds_dma: n = max(n, 1)
    if prod.wide_store and (cons.is_valu or cons.is_ds or cons.is_vmem or cons.is_mfma):
        data = regs_of(prod.ops[1]) if prod.op.startswith("global_") else regs_of(prod.ops[0])
        if data & cons.w: n = max(n, 2 if cons.is_valu else 1)
    return n

def pad(lines, horizon=12):
    ins = [Ins(t) for t in lines]
    out = []
    hist = []
    pending = {}
    seen = set()
    nins = 0
    for it in ins:
        if it.label:
            name = it.text.strip()[:-1]
            seen.add(name)
            merged = {id(h[0]): h for h in hist}
            for snap in pending.pop(name, []):
                for h in snap:
                    if id(h[0]) not in merged or merged[id(h[0])][1] > h[1]:
                        merged[id(h[0])] = h
            hist = list(merged.values())
            out.append(it.text)
            continue
        if not it.op:
            out.append(it.text); continue
        req = 0
        for p, age in hist:
            req = max(req, need(p, it) - age)
        while req > 0:
            k = min(req, 16)
            out.append(f"    s_nop {k-1}")
            nins += 1
            hist = [(p, a + k) for p, a in hist]
            req -= k
        out.append(it.text)
        hist = [(p, a + it.states) for p, a in hist if a + it.states < horizon]
        hist.append((it, 0))
        if it.is_branch:
            if it.target in seen:
                pass
            else:
                pending.setdefault(it.target, []).append(list(hist))
            if it.op == "s_branch":
                hist = []
        if it.op == "s_endpgm":
            hist = []
    return out, nins

class Gen:
    def __init__(self):
        self.lines = []
        self.vm_n = 0
        self.vm_bound = 0
    def I(self, s):
        for x in s.strip().split("\n"):
            x = x.strip()
            if x: self.lines.append(x if x.endswith(":") else "    " + x)
    def L(self, name):
        self.lines.append(name + ":")
    def C(self, s):
        self.lines.append("    ; " + s)
    def vm(self, s):
        self.I(s)
        self.vm_n += 1
        self.vm_bound += 1
        return self.vm_n - 1
    def vm_wait(self, idx):
        n = min(self.vm_n - idx - 1, 63)
        if n < self.vm_bound:
            self.I(f"s_waitcnt vmcnt({n})")
            self.vm_bound = n
    def vm_drain(self):
        self.I("s_waitcnt vmcnt(0)")
        self.vm_bound = 0
    def window(self, W):
        if self.vm_bound > W - 1:
            self.I(f"s_waitcnt vmcnt({W-1})")
            self.vm_bound = W - 1
    def text(self):
        out, n = pad(self.lines)
        return "\n".join(out), n
```

```python
import sys, struct, math
from asmlib import Gen

NAME = "gated_mix__gqa_block_cached__dense_activation_relu__decode_kernel"

QOFF, HOFF, ODOFF, OSOFF, YOFF, EPOCH = 0x0, 0x20000, 0x40000, 0xC0000, 0xD0000, 0xF8000
STAMP_OFF = 200 << 20
WOI, W2I = 0, 65536
ST0, ST1, XI, MISC = 131072, 145408, 159744, 163328
QI, OI, HI, RED = ST0, ST0 + 1024, ST0 + 2048, ST0 + 4096
M_TAG, M_G, M_MX, M_LS = MISC, MISC + 4, MISC + 16, MISC + 64
LDS_BYTES = 163840
sX, sK, sV, sWQ, sWO, sBX, sW1, sW2, sGW, sOUT, sDBG, sWS = 4, 6, 8, 10, 12, 14, 16, 18, 20, 22, 24, 26
rK, rV, rW, rX, rWO, rW2, rOUT, rG = 28, 32, 36, 40, 44, 48, 56, 60
sOUTB, sBSTR, sLO, sTASK = 52, 53, 54, 55
sWAVE = 3
sGRP, sS, sB, sHKV, sC, sT0, sLDSW, sKV, sTAG, sG, sSELLO, sSELHI, sSC = 64, 65, 66, 67, 68, 69, 70, 71, 72, 73, 74, 75, 76
sSTR, sSTG, sVB = 77, 78, 79
sSTAMP = 80
sP0, sP1, sT1, sT2 = 96, 98, 100, 101
sWT = 4
vLANE = 1
vKD = 2
vKA = 10
vVO = 14
vA0 = 15
vT = 16
vS = 32
vRD = 48
vPT = 64
vRING = 80
vP = 240
aACC, aQ, aKT, aV = 0, 64, 96, 160
aWO, aW2 = 64, 128
vG_, vN_ = 20, 21

def f32(x):
    return "0x%08x" % struct.unpack("<I", struct.pack("<f", x))[0]

def gen(W=16, stamps=False, vpre=0, code_pf=True, spin=100000):
    G = Gen()
    I, vm = G.I, G.vm
    nst = [0]
    def stamp():
        if stamps:
            k = nst[0]; nst[0] += 1
            assert k < 8
            I(f"s_memrealtime s[{sSTAMP+2*k}:{sSTAMP+2*k+1}]")
            I("s_waitcnt lgkmcnt(0)")
    def srd(r, p, size):
        I(f"s_mov_b32 s{r}, s{p}")
        I(f"s_and_b32 s{r+1}, s{p+1}, 0xffff")
        I(f"s_mov_b32 s{r+2}, {size}")
        I(f"s_mov_b32 s{r+3}, 0x20000")
    def xsum(v, t, op="v_add_f32"):
        I(f"v_mov_b32 v{t}, v{v}")
        I(f"v_permlane16_swap_b32 v{v}, v{t}")
        I(f"{op} v{v}, v{v}, v{t}")
        I(f"v_mov_b32 v{t}, v{v}")
        I(f"v_permlane32_swap_b32 v{v}, v{t}")
        I(f"{op} v{v}, v{v}, v{t}")
    def poll(name, reload, check):
        I(f"s_mov_b32 s{sT2}, 0")
        G.L(f"L_{name}_chk")
        check()
        I(f"s_cbranch_vccz L_{name}_ok")
        I(f"s_add_u32 s{sT2}, s{sT2}, 1")
        I(f"s_cmp_gt_u32 s{sT2}, {spin}")
        I(f"s_cbranch_scc1 L_{name}_ok")
        reload()
        I("s_waitcnt vmcnt(0)")
        I(f"s_branch L_{name}_chk")
        G.L(f"L_{name}_ok")
    def tagcheck(regs):
        I(f"v_cmp_ne_u32 vcc, s{sTAG}, v{regs[0]}")
        for r in regs[1:]:
            I(f"v_cmp_ne_u32 s[{sP0}:{sP0+1}], s{sTAG}, v{r}")
            I(f"s_or_b64 vcc, vcc, s[{sP0}:{sP0+1}]")

    if stamps:
        I(f"s_memrealtime s[{sSTAMP}:{sSTAMP+1}]"); nst[0] = 1
    I("s_cmp_ge_u32 s2, 256")
    I("s_cbranch_scc1 L_end")
    I("s_load_dwordx16 s[4:19], s[0:1], 0")
    I("s_load_dwordx8 s[20:27], s[0:1], 64")
    I(f"v_lshrrev_b32 v{vT}, 6, v0")
    I(f"v_and_b32 v{vLANE}, 63, v0")
    I(f"v_readfirstlane_b32 s{sWAVE}, v{vT}")
    if code_pf:
        I(f"s_cmp_eq_u32 s{sWAVE}, 3")
        I("s_cbranch_scc0 L_nopf")
        I(f"s_getpc_b64 s[{sP0}:{sP0+1}]")
        G.L("L_pc")
        I(f"s_sub_u32 s{sP0}, s{sP0}, L_pc-{NAME}")
        I(f"s_subb_u32 s{sP0+1}, s{sP0+1}, 0")
        I(f"v_lshlrev_b32 v{vT+1}, 7, v{vLANE}")
        for k in range(3):
            I(f"v_min_u32 v{vT+2}, L_code_end-{NAME}-4, v{vT+1}")
            I(f"global_load_dword v{vT+3}, v{vT+2}, s[{sP0}:{sP0+1}]")
            if k < 2: I(f"v_add_u32 v{vT+1}, 0x2000, v{vT+1}")
        G.L("L_nopf")
    I(f"s_lshr_b32 s{sGRP}, s2, 3")
    I(f"s_and_b32 s{sS}, s2, 7")
    I(f"s_lshr_b32 s{sB}, s{sGRP}, 3")
    I(f"s_and_b32 s{sHKV}, s{sGRP}, 7")
    I(f"s_add_u32 s{sC}, s{sS}, s{sHKV}")
    I(f"s_and_b32 s{sC}, s{sC}, 7")
    I(f"s_lshl_b32 s{sLDSW}, s{sWAVE}, 15")
    I(f"s_lshl_b32 s{sKV}, s{sGRP}, 21")
    I(f"s_lshl_b32 s{sT0}, s{sC}, 18")
    I(f"s_add_u32 s{sKV}, s{sKV}, s{sT0}")
    I(f"s_lshl_b32 s{sT0}, s{sWAVE}, 13")
    I(f"s_add_u32 s{sKV}, s{sKV}, s{sT0}")
    I(f"v_lshrrev_b32 v{vT}, 5, v{vLANE}")
    I(f"v_and_b32 v{vT+1}, 31, v{vLANE}")
    I(f"v_lshlrev_b32 v{vT+2}, 2, v{vT}")
    I(f"v_xor_b32 v{vT+1}, v{vT+1}, v{vT+2}")
    I(f"v_lshlrev_b32 v{vT+1}, 4, v{vT+1}")
    I(f"v_lshl_or_b32 v{vKD}, v{vT}, 9, v{vT+1}")
    for i in range(1, 8):
        I(f"v_xor_b32 v{vKD+i}, {(8*(i&1) + (i>>1)) << 4}, v{vKD}")
    I(f"v_lshrrev_b32 v{vG_}, 4, v{vLANE}")
    I(f"v_and_b32 v{vN_}, 15, v{vLANE}")
    I("s_waitcnt lgkmcnt(0)")
    I(f"s_load_dword s{sTAG}, s[{sWS}:{sWS+1}], {EPOCH}")
    srd(rK, sK, 0x4000000)
    I(f"s_mov_b32 s{sTASK}, 0")
    I(f"s_cmp_eq_u32 s{sWAVE}, 0")
    I("s_cbranch_scc1 L_roleQ")
    I(f"s_cmp_eq_u32 s{sWAVE}, 1")
    I("s_cbranch_scc1 L_roleH")
    I(f"s_cmp_eq_u32 s{sWAVE}, 2")
    I("s_cbranch_scc0 L_roleDone")
    srd(rG, sGW, 896)
    I(f"s_mul_i32 s{sT0}, s{sB}, 896")
    I(f"s_add_u32 s{rX}, s{sX}, s{sT0}")
    I(f"s_addc_u32 s{rX+1}, s{sX+1}, 0")
    I(f"s_and_b32 s{rX+1}, s{rX+1}, 0xffff")
    I(f"s_mov_b32 s{rX+2}, 896")
    I(f"s_mov_b32 s{rX+3}, 0x20000")
    I(f"v_lshlrev_b32 v{vT}, 4, v{vLANE}")
    I(f"buffer_load_dwordx4 v[{vRING}:{vRING+3}], v{vT}, s[{rX}:{rX+3}], 0 offen")
    I(f"buffer_load_dwordx4 v[{vRING+4}:{vRING+7}], v{vT}, s[{rG}:{rG+3}], 0 offen")
    I(f"s_mov_b32 s{sTASK}, 2")
    I("s_branch L_roleDone")
    G.L("L_roleH")
    I(f"s_and_b32 s{sT0}, s{sS}, 1")
    I(f"s_cmp_eq_u32 s{sT0}, 0")
    I("s_cbranch_scc0 L_roleDone")
    I(f"s_cmp_lt_u32 s{sGRP}, 28")
    I("s_cbranch_scc0 L_roleDone")
    I(f"s_and_b32 s{sT0}, s{sGRP}, 28")
    I(f"s_lshr_b32 s{sT1}, s{sS}, 1")
    I(f"s_add_u32 s{sT0}, s{sT0}, s{sT1}")
    I(f"s_lshl_b32 s{sT0}, s{sT0}, 2")
    I(f"s_and_b32 s{sT1}, s{sGRP}, 3")
    I(f"s_add_u32 s{sT0}, s{sT0}, s{sT1}")
    I(f"s_lshl_b32 s{sT1}, s{sT0}, 5")
    I(f"s_add_u32 s{rW}, s{sW1}, s{sT1}")
    I(f"s_addc_u32 s{rW+1}, s{sW1+1}, 0")
    I(f"s_sub_u32 s{rW+2}, {448*3584}, s{sT1}")
    I(f"s_movk_i32 s{sSTR}, 3584")
    I(f"s_mov_b32 s{sSTG}, {ST1}")
    I(f"s_lshl_b32 s{sOUTB}, s{sT0}, 7")
    I(f"s_add_u32 s{sOUTB}, s{sOUTB}, {HOFF}")
    I(f"s_movk_i32 s{sBSTR}, {1792*8}")
    I(f"s_mov_b32 s{sLO}, 0")
    I("s_branch L_taskLoads")
    G.L("L_roleQ")
    I(f"s_lshl_b32 s{sT0}, s{sS}, 2")
    I(f"s_add_u32 s{sT0}, s{sT0}, s{sB}")
    I(f"s_lshl_b32 s{sT1}, s{sT0}, 5")
    I(f"s_lshl_b32 s{sT2}, s{sHKV}, 10")
    I(f"s_add_u32 s{sT1}, s{sT1}, s{sT2}")
    I(f"s_add_u32 s{rW}, s{sWQ}, s{sT1}")
    I(f"s_addc_u32 s{rW+1}, s{sWQ+1}, 0")
    I(f"s_sub_u32 s{rW+2}, {448*8192}, s{sT1}")
    I(f"s_movk_i32 s{sSTR}, 8192")
    I(f"s_mov_b32 s{sSTG}, {ST0}")
    I(f"s_lshl_b32 s{sOUTB}, s{sT0}, 7")
    I(f"s_lshl_b32 s{sT2}, s{sHKV}, 14")
    I(f"s_add_u32 s{sOUTB}, s{sOUTB}, s{sT2}")
    I(f"s_movk_i32 s{sBSTR}, 4096")
    I(f"s_mov_b32 s{sLO}, 0xff800000")
    G.L("L_taskLoads")
    I(f"s_and_b32 s{rW+1}, s{rW+1}, 0xffff")
    I(f"s_mov_b32 s{rW+3}, 0x20000")
    srd(rX, sX, 3584)
    I(f"v_lshlrev_b32 v{vT}, 4, v{vLANE}")
    I(f"s_mov_b32 m0, {XI}")
    for i in range(4):
        if i == 3: I("s_mov_b32 exec_hi, 0")
        I(f"buffer_load_dwordx4 v{vT}, s[{rX}:{rX+3}], 0 offen offset:{i*1024} lds")
    I("s_mov_b64 exec, -1")
    I(f"v_lshrrev_b32 v{vT+1}, 1, v{vLANE}")
    I(f"v_mul_lo_u32 v{vT+1}, v{vT+1}, s{sSTR}")
    I(f"v_and_b32 v{vT+2}, 1, v{vLANE}")
    I(f"v_lshl_add_u32 v{vT+1}, v{vT+2}, 4, v{vT+1}")
    I(f"s_lshl_b32 s{sT1}, s{sSTR}, 5")
    I(f"s_mov_b32 s{sT0}, 0")
    for i in range(14):
        I(f"s_add_u32 m0, s{sSTG}, {i*1024}")
        if i: I(f"s_add_u32 s{sT0}, s{sT0}, s{sT1}")
        I(f"buffer_load_dwordx4 v{vT+1}, s[{rW}:{rW+3}], s{sT0} offen lds")
    I(f"s_mov_b32 s{sTASK}, 1")
    G.L("L_roleDone")
    G.vm_n = 0; G.vm_bound = 18
    kidx = {}
    def k_tile(t, win=True):
        I(f"s_add_u32 s{sT0}, s{sKV}, {t*32768}")
        for i in range(8):
            if i % 4 == 0:
                if i == 4: I(f"s_add_u32 s{sT0}, s{sT0}, 4096")
                I(f"s_add_u32 m0, s{sLDSW}, {(t & 3)*8192 + (i>>2)*4096}")
            if win: G.window(W)
            kidx[t] = vm(f"buffer_load_dwordx4 v{vKD+i}, s[{rK}:{rK+3}], s{sT0} offen offset:{(i&3)*1024} nt lds")
    vidx = {}
    def v_reg(j):
        return ("a", aV + 4*j) if j < 24 else ("v", vRING + 4*(j-24))
    vcur = [None]; vnext = [0]
    def v_loads(n):
        for _ in range(min(n, 64 - vnext[0])):
            j = vnext[0]; vnext[0] += 1
            beta, h, tp, r = j >> 4, (j >> 3) & 1, (j >> 2) & 1, j & 3
            base = (2*beta + tp)*32768 + (r >> 1)*4096
            if vcur[0] != base:
                I(f"s_add_u32 s{sVB}, s{sKV}, {base}")
                vcur[0] = base
            G.window(W)
            f, b0 = v_reg(j)
            vidx[j] = vm(f"buffer_load_dwordx4 {f}[{b0}:{b0+3}], v{vVO}, s[{rV}:{rV+3}], s{sVB} offen offset:{(r&1)*2048 + h*256} nt")
    k_tile(0, win=False); k_tile(1, win=False)
    srd(rV, sV, 0x4000000)
    I(f"v_lshlrev_b32 v{vVO}, 9, v{vG_}")
    I(f"v_lshl_or_b32 v{vVO}, v{vN_}, 4, v{vVO}")
    I(f"v_and_b32 v{vT+6}, 3, v{vN_}")
    I(f"v_lshrrev_b32 v{vT+7}, 2, v{vN_}")
    I(f"v_lshl_or_b32 v{vT+6}, v{vT+6}, 2, v{vT+7}")
    I(f"v_xor_b32 v{vT+7}, v{vG_}, v{vN_}")
    I(f"v_lshlrev_b32 v{vT+7}, 4, v{vT+7}")
    I(f"v_lshl_or_b32 v{vT+6}, v{vT+6}, 9, v{vT+7}")
    I(f"v_add_u32 v{vKA}, s{sLDSW}, v{vT+6}")
    for j in range(1, 4):
        I(f"v_xor_b32 v{vKA+j}, {j << 6}, v{vKA}")
    I(f"s_mov_b32 s{sSELLO}, 0x05040100")
    I(f"s_mov_b32 s{sSELHI}, 0x07060302")
    I(f"s_mov_b32 s{sSC}, {f32(math.log2(math.e)/16.0)}")
    I(f"s_cmp_eq_u32 s{sC}, 7")
    I(f"s_cselect_b32 s{sT1}, 0, {4096*896}")
    I(f"s_cselect_b32 s{sT2}, 0, {1792*896}")
    I(f"s_mov_b32 s{rWO}, s{sWO}")
    I(f"s_and_b32 s{rWO+1}, s{sWO+1}, 0xffff")
    I(f"s_mov_b32 s{rWO+2}, s{sT1}")
    I(f"s_mov_b32 s{rWO+3}, 0x20000")
    I(f"s_mov_b32 s{rW2}, s{sW2}")
    I(f"s_and_b32 s{rW2+1}, s{sW2+1}, 0xffff")
    I(f"s_mov_b32 s{rW2+2}, s{sT2}")
    I(f"s_mov_b32 s{rW2+3}, 0x20000")
    srd(rOUT, sOUT, 3584)
    I("s_waitcnt lgkmcnt(0)")
    I(f"s_add_u32 s{sTAG}, s{sTAG}, 1")
    I(f"s_cmp_eq_u32 s{sTASK}, 0")
    I("s_cbranch_scc1 L_roleEnd")
    I("s_waitcnt vmcnt(16)")
    I(f"s_cmp_eq_u32 s{sTASK}, 2")
    I("s_cbranch_scc1 L_gate")
    vA, vB, vC = vRING, vRING + 56, vT + 8
    I(f"v_and_b32 v{vT}, 3, v{vLANE}")
    I(f"v_mul_u32_u24 v{vT}, 896, v{vT}")
    I(f"v_lshl_add_u32 v{vT}, v{vG_}, 3, v{vT}")
    I(f"v_add_u32 v{vT}, {XI}, v{vT}")
    I(f"v_lshlrev_b32 v{vT+1}, 3, v{vLANE}")
    I(f"v_add_u32 v{vT+1}, s{sSTG}, v{vT+1}")
    def task_reads(s):
        I(f"ds_read_b64 v[{vA+4*s}:{vA+4*s+1}], v{vT} offset:{s*64}")
        I(f"ds_read_b64 v[{vA+4*s+2}:{vA+4*s+3}], v{vT} offset:{s*64+32}")
        I(f"ds_read_b64_tr_b16 v[{vB+4*s}:{vB+4*s+1}], v{vT+1} offset:{s*1024}")
        I(f"ds_read_b64_tr_b16 v[{vB+4*s+2}:{vB+4*s+3}], v{vT+1} offset:{s*1024+512}")
    for s in range(3): task_reads(s)
    for s in range(14):
        I(f"s_waitcnt lgkmcnt({4*min(13 - s, 2)})")
        c = "0" if s == 0 else f"v[{vC}:{vC+3}]"
        I(f"v_mfma_f32_16x16x32_bf16 v[{vC}:{vC+3}], v[{vA+4*s}:{vA+4*s+3}], v[{vB+4*s}:{vB+4*s+3}], {c}")
        if s + 3 < 14: task_reads(s + 3)
    I(f"v_lshlrev_b32 v{vT+2}, 3, v{vN_}")
    I(f"v_add_u32 v{vT+2}, s{sOUTB}, v{vT+2}")
    I(f"v_mov_b32 v{vT+13}, s{sTAG}")
    I(f"v_mov_b32 v{vT+15}, s{sTAG}")
    I("s_mov_b64 exec, 0xffff")
    for r in range(4):
        d = vT + 12 + 2*(r & 1)
        I(f"v_max_f32 v{d}, s{sLO}, v{vC+r}")
        I(f"v_cvt_pk_bf16_f32 v{d}, v{d}, v{d}")
        I(f"global_store_dwordx2 v{vT+2}, v[{d}:{d+1}], s[{sWS}:{sWS+1}] sc1")
        if r < 3: I(f"v_add_u32 v{vT+2}, s{sBSTR}, v{vT+2}")
    I("s_mov_b64 exec, -1")
    I(f"s_cmp_eq_u32 s{sWAVE}, 0")
    I("s_cbranch_scc0 L_roleEnd")
    I(f"v_mov_b32 v{vT}, {M_TAG}")
    I(f"v_mov_b32 v{vT+1}, s{sTAG}")
    I(f"ds_write_b32 v{vT}, v{vT+1}")
    I("s_branch L_roleEnd")
    G.L("L_gate")
    xa, ga = vRING, vRING + 4
    I(f"v_mov_b32 v{vT}, 0")
    for j in range(4):
        I(f"v_lshlrev_b32 v{vT+1}, 16, v{xa+j}")
        I(f"v_lshlrev_b32 v{vT+2}, 16, v{ga+j}")
        I(f"v_and_b32 v{vT+3}, 0xffff0000, v{xa+j}")
        I(f"v_and_b32 v{vT+8}, 0xffff0000, v{ga+j}")
        I(f"v_fmac_f32 v{vT}, v{vT+1}, v{vT+2}")
        I(f"v_fmac_f32 v{vT}, v{vT+3}, v{vT+8}")
    for ror in (8, 4, 2, 1):
        I(f"v_add_f32_dpp v{vT}, v{vT}, v{vT} row_ror:{ror} row_mask:0xf bank_mask:0xf")
    xsum(vT, vT+1)
    I(f"v_mul_f32 v{vT}, {f32(-math.log2(math.e))}, v{vT}")
    I(f"v_exp_f32 v{vT}, v{vT}")
    I(f"v_add_f32 v{vT}, 1.0, v{vT}")
    I(f"v_rcp_f32 v{vT}, v{vT}")
    I(f"v_mov_b32 v{vT+1}, {M_G}")
    I(f"ds_write_b32 v{vT+1}, v{vT}")
    G.L("L_roleEnd")
    stamp()
    G.vm_bound = 18 + 16 + 4
    k_tile(2); k_tile(3)
    v_loads(vpre)
    I("s_waitcnt lgkmcnt(0)")
    I("s_barrier")
    I(f"v_mov_b32 v{vT}, {MISC}")
    I(f"ds_read_b64 v[{vT+2}:{vT+3}], v{vT}")
    I(f"s_lshl_b32 s{sT0}, s{sHKV}, 2")
    I(f"s_add_u32 s{sT0}, s{sT0}, s{sB}")
    I(f"s_lshl_b32 s{sT0}, s{sT0}, 12")
    I(f"s_lshl_b32 s{sT1}, s{sWAVE}, 10")
    I(f"s_add_u32 s{sT0}, s{sT0}, s{sT1}")
    I(f"v_lshlrev_b32 v{vA0}, 4, v{vLANE}")
    I(f"v_add_u32 v{vA0}, s{sT0}, v{vA0}")
    vq = vT + 8
    qload = f"global_load_dwordx4 v[{vq}:{vq+3}], v{vA0}, s[{sWS}:{sWS+1}] offset:{QOFF} sc1"
    qg = vm(qload)
    I("s_waitcnt lgkmcnt(0)")
    I(f"v_readfirstlane_b32 s{sTAG}, v{vT+2}")
    I(f"v_readfirstlane_b32 s{sG}, v{vT+3}")
    v_loads(16)
    G.vm_wait(qg)
    poll("q", lambda: I(qload), lambda: tagcheck([vq+1, vq+3]))
    stamp()
    I(f"v_perm_b32 v{vq}, v{vq+2}, v{vq}, s{sSELLO}")
    I(f"s_lshl_b32 s{sT1}, s{sWAVE}, 8")
    I(f"v_lshlrev_b32 v{vT}, 2, v{vLANE}")
    I(f"v_add_u32 v{vT}, s{sT1}, v{vT}")
    I(f"v_add_u32 v{vT}, {QI}, v{vT}")
    I(f"ds_write_b32 v{vT}, v{vq}")
    I(f"v_and_b32 v{vT+1}, 1, v{vLANE}")
    I(f"v_lshlrev_b32 v{vT+1}, 9, v{vT+1}")
    I(f"v_lshl_add_u32 v{vT+1}, v{vG_}, 4, v{vT+1}")
    I(f"v_add_u32 v{vT+1}, {QI}, v{vT+1}")
    I("s_waitcnt lgkmcnt(0)")
    I("s_barrier")
    for s in range(8):
        I(f"ds_read_b128 a[{aQ+4*s}:{aQ+4*s+3}], v{vT+1} offset:{s*64}")
    def k_reads(t):
        for s in range(8):
            d = aKT + 32*(t & 1) + 4*s
            I(f"ds_read_b128 a[{d}:{d+3}], v{vKA + (s & 3)} offset:{(t & 3)*8192 + (s >> 2)*256}")
    def qk_mfma(t):
        for s in range(8):
            d = aKT + 32*(t & 1) + 4*s
            c = "0" if s == 0 else f"v[{vS+4*t}:{vS+4*t+3}]"
            I(f"v_mfma_f32_16x16x32_bf16 v[{vS+4*t}:{vS+4*t+3}], a[{d}:{d+3}], a[{aQ+4*s}:{aQ+4*s+3}], {c}")
    I("s_waitcnt lgkmcnt(0)")
    k_reads(0)
    for t in range(4):
        I("s_waitcnt lgkmcnt(0)")
        if t < 3: k_reads(t + 1)
        k_tile(t + 4)
        qk_mfma(t)
    v_loads(16)
    G.vm_wait(kidx[4])
    k_reads(4)
    for t in range(4, 8):
        I("s_waitcnt lgkmcnt(0)")
        if t < 7:
            G.vm_wait(kidx[t + 1])
            k_reads(t + 1)
        qk_mfma(t)
        v_loads(4)
    stamp()
    vM = vT
    I(f"v_max3_f32 v{vM}, v{vS}, v{vS+1}, v{vS+2}")
    for k in range(3, 31, 2):
        I(f"v_max3_f32 v{vM}, v{vM}, v{vS+k}, v{vS+k+1}")
    I(f"v_max_f32 v{vM}, v{vM}, v{vS+31}")
    xsum(vM, vT+1, "v_max_f32")
    I(f"v_and_b32 v{vT+2}, 1, v{vLANE}")
    I(f"v_lshlrev_b32 v{vT+2}, 4, v{vT+2}")
    I(f"s_lshl_b32 s{sT1}, s{sWAVE}, 2")
    I(f"v_add_u32 v{vT+3}, s{sT1}, v{vT+2}")
    I(f"v_add_u32 v{vT+3}, {MISC}, v{vT+3}")
    I(f"v_add_u32 v{vT+2}, {MISC}, v{vT+2}")
    I(f"ds_write_b32 v{vT+3}, v{vM} offset:{M_MX - MISC}")
    I("s_waitcnt lgkmcnt(0)")
    I("s_barrier")
    I(f"ds_read_b128 v[{vT+8}:{vT+11}], v{vT+2} offset:{M_MX - MISC}")
    vWD = vA0
    I(f"v_lshrrev_b32 v{vT+6}, 3, v{vLANE}")
    I(f"v_and_b32 v{vT+7}, 6, v{vT+6}")
    I(f"v_and_b32 v{vT+12}, 7, v{vLANE}")
    I(f"v_xor_b32 v{vT+7}, v{vT+7}, v{vT+12}")
    I(f"v_lshlrev_b32 v{vT+7}, 4, v{vT+7}")
    I(f"v_mul_u32_u24 v{vT+6}, 896, v{vT+6}")
    I(f"v_add_u32 v{vWD}, v{vT+6}, v{vT+7}")
    I(f"s_lshl_b32 s{sT0}, s{sHKV}, 9")
    I(f"s_lshl_b32 s{sT1}, s{sWAVE}, 7")
    I(f"s_add_u32 s{sT0}, s{sT0}, s{sT1}")
    I(f"s_mul_i32 s{sT0}, s{sT0}, 896")
    I(f"s_lshl_b32 s{sT1}, s{sC}, 7")
    I(f"s_add_u32 s{sT0}, s{sT0}, s{sT1}")
    I(f"s_lshl_b32 s{sT2}, s{sWAVE}, 14")
    for i in range(16):
        I(f"s_add_u32 m0, s{sT2}, {WOI + i*1024}")
        if i: I(f"s_add_u32 s{sT0}, s{sT0}, {8*896}")
        G.window(W)
        wlast = vm(f"buffer_load_dwordx4 v{vWD}, s[{rWO}:{rWO+3}], s{sT0} offen lds")
    I(f"s_mul_i32 s{sT0}, s{sHKV}, 224")
    I(f"s_mul_i32 s{sT2}, s{sWAVE}, 56")
    I(f"s_add_u32 s{sT0}, s{sT0}, s{sT2}")
    I(f"s_mul_i32 s{sT0}, s{sT0}, 896")
    I(f"s_add_u32 s{sT0}, s{sT0}, s{sT1}")
    I(f"s_mul_i32 s{sT2}, s{sWAVE}, {7*1024}")
    for i in range(7):
        I(f"s_add_u32 m0, s{sT2}, {W2I + i*1024}")
        if i: I(f"s_add_u32 s{sT0}, s{sT0}, {8*896}")
        G.window(W)
        wlast = vm(f"buffer_load_dwordx4 v{vWD}, s[{rW2}:{rW2+3}], s{sT0} offen lds")
    vH = vT + 12
    I(f"s_mul_i32 s{sT0}, s{sB}, 1792")
    I(f"s_mul_i32 s{sT1}, s{sHKV}, 224")
    I(f"s_add_u32 s{sT0}, s{sT0}, s{sT1}")
    I(f"s_mul_i32 s{sT1}, s{sWAVE}, 56")
    I(f"s_add_u32 s{sT0}, s{sT0}, s{sT1}")
    I(f"s_lshl_b32 s{sT0}, s{sT0}, 3")
    I(f"s_add_u32 s{sT0}, s{sT0}, {HOFF}")
    I(f"v_min_u32 v{vA0}, 27, v{vLANE}")
    I(f"v_lshlrev_b32 v{vA0}, 4, v{vA0}")
    I(f"v_add_u32 v{vA0}, s{sT0}, v{vA0}")
    hload = f"global_load_dwordx4 v[{vH}:{vH+3}], v{vA0}, s[{sWS}:{sWS+1}] sc1"
    hg = vm(hload)
    I("s_waitcnt lgkmcnt(0)")
    I(f"v_max3_f32 v{vM}, v{vT+8}, v{vT+9}, v{vT+10}")
    I(f"v_max_f32 v{vM}, v{vM}, v{vT+11}")
    I(f"v_mul_f32 v{vM}, s{sSC}, v{vM}")
    vL = vT + 1
    for k in range(32):
        I(f"v_fma_f32 v{vS+k}, v{vS+k}, s{sSC}, -v{vM}")
    for k in range(32):
        I(f"v_exp_f32 v{vS+k}, v{vS+k}")
    I(f"v_add_f32 v{vL}, v{vS}, v{vS+1}")
    for k in range(2, 32):
        I(f"v_add_f32 v{vL}, v{vL}, v{vS+k}")
    for k in range(16):
        I(f"v_cvt_pk_bf16_f32 v{vP+k}, v{vS+2*k}, v{vS+2*k+1}")
    xsum(vL, vT+6)
    I(f"ds_write_b32 v{vT+3}, v{vL} offset:{M_LS - MISC}")
    def pv(beta, h):
        j0 = beta*16 + h*8
        G.vm_wait(vidx[j0 + 7])
        for c4 in range(4):
            src = []
            for q in range(8):
                f, b0 = v_reg(j0 + q)
                if f == "a":
                    t = vRD + 8*(c4 & 1) + q
                    I(f"v_accvgpr_read_b32 v{t}, a{b0 + c4}")
                    src.append(t)
                else:
                    src.append(b0 + c4)
            for e, sel in ((0, sSELLO), (1, sSELHI)):
                pt = vPT + 8*(c4 & 1) + 4*e
                for i in range(4):
                    I(f"v_perm_b32 v{pt+i}, v{src[2*i+1]}, v{src[2*i]}, s{sel}")
            for e in (0, 1):
                pt = vPT + 8*(c4 & 1) + 4*e
                acc = aACC + 4*(h*8 + 2*c4 + e)
                c = "0" if beta == 0 else f"a[{acc}:{acc+3}]"
                I(f"v_mfma_f32_16x16x32_bf16 a[{acc}:{acc+3}], v[{vP+4*beta}:{vP+4*beta+3}], v[{pt}:{pt+3}], {c}")
    pv(0, 0); pv(0, 1)
    v_loads(8)
    pv(1, 0); pv(1, 1)
    v_loads(8)
    v_loads(64)
    G.vm_wait(hg)
    I("s_mov_b64 exec, 0xfffffff")
    poll("h", lambda: I(hload), lambda: tagcheck([vH+1, vH+3]))
    I(f"v_perm_b32 v{vH}, v{vH+2}, v{vH}, s{sSELLO}")
    def img_pos(dst, row, t):
        I(f"v_lshrrev_b32 v{dst}, 5, v{row}")
        I(f"v_lshlrev_b32 v{dst}, 6, v{dst}")
        I(f"v_bfe_u32 v{t}, v{row}, 2, 2")
        I(f"v_lshl_add_u32 v{dst}, v{t}, 4, v{dst}")
        I(f"v_bfe_u32 v{t}, v{row}, 4, 1")
        I(f"v_lshl_add_u32 v{dst}, v{t}, 3, v{dst}")
        I(f"v_and_b32 v{t}, 3, v{row}")
        I(f"v_lshl_add_u32 v{dst}, v{t}, 1, v{dst}")
    I(f"s_mul_i32 s{sT1}, s{sWAVE}, 56")
    I(f"v_lshlrev_b32 v{vT+6}, 1, v{vLANE}")
    I(f"v_add_u32 v{vT+6}, s{sT1}, v{vT+6}")
    img_pos(vT+7, vT+6, vT+8)
    I(f"v_add_u32 v{vT+7}, {HI}, v{vT+7}")
    I(f"ds_write_b32 v{vT+7}, v{vH}")
    I("s_mov_b64 exec, -1")
    vWB = vT + 9
    I(f"v_lshrrev_b32 v{vT+6}, 2, v{vLANE}")
    I(f"v_and_b32 v{vT+7}, 6, v{vT+6}")
    I(f"v_bfe_u32 v{vT+8}, v{vLANE}, 1, 1")
    I(f"s_lshl_b32 s{sT1}, s{sWAVE}, 1")
    I(f"v_or_b32 v{vT+8}, s{sT1}, v{vT+8}")
    I(f"v_xor_b32 v{vT+7}, v{vT+7}, v{vT+8}")
    I(f"v_lshlrev_b32 v{vT+7}, 4, v{vT+7}")
    I(f"v_lshl_or_b32 v{vT+7}, v{vT+6}, 7, v{vT+7}")
    I(f"v_and_b32 v{vT+8}, 1, v{vLANE}")
    I(f"v_lshl_or_b32 v{vWB}, v{vT+8}, 3, v{vT+7}")
    I(f"v_add_u32 v{vWB+1}, {W2I}, v{vWB}")
    I(f"v_lshlrev_b32 v{vWB+2}, 4, v{vG_}")
    I(f"v_add_u32 v{vWB+2}, {OI}, v{vWB+2}")
    G.vm_wait(wlast)
    I("s_waitcnt lgkmcnt(0)")
    I("s_barrier")
    vYB, vYA = vT + 12, vT + 4
    vHA = vRD
    for s in range(7):
        I(f"ds_read_b64_tr_b16 a[{aW2+4*s}:{aW2+4*s+1}], v{vWB+1} offset:{s*4096}")
        I(f"ds_read_b64_tr_b16 a[{aW2+4*s+2}:{aW2+4*s+3}], v{vWB+1} offset:{s*4096+2048}")
    I("s_waitcnt lgkmcnt(0)")
    for s in range(7):
        I(f"ds_read_b128 v[{vRD+4*(s%4)}:{vRD+4*(s%4)+3}], v{vWB+2} offset:{HI - OI + s*64}")
        if s % 4 == 3 or s == 6:
            I("s_waitcnt lgkmcnt(0)")
            for s2 in range(s - (s % 4), s + 1):
                c = "0" if s2 == 0 else f"v[{vYB}:{vYB+3}]"
                I(f"v_mfma_f32_16x16x32_bf16 v[{vYB}:{vYB+3}], v[{vRD+4*(s2%4)}:{vRD+4*(s2%4)+3}], a[{aW2+4*s2}:{aW2+4*s2+3}], {c}")
    for half in range(4):
        for s in range(4*half, 4*half + 4):
            I(f"ds_read_b64_tr_b16 a[{aWO+4*s}:{aWO+4*s+1}], v{vWB} offset:{s*4096}")
            I(f"ds_read_b64_tr_b16 a[{aWO+4*s+2}:{aWO+4*s+3}], v{vWB} offset:{s*4096+2048}")
        I("s_waitcnt lgkmcnt(0)")
    stamp()
    pv(2, 0); pv(2, 1); pv(3, 0); pv(3, 1)
    stamp()
    I(f"v_and_b32 v{vT+6}, 15, v{vLANE}")
    I(f"v_lshlrev_b32 v{vT+6}, 3, v{vT+6}")
    I(f"s_lshl_b32 s{sT1}, s{sWAVE}, 11")
    I(f"s_add_u32 s{sT1}, s{sT1}, {RED}")
    I(f"v_add_u32 v{vT+6}, s{sT1}, v{vT+6}")
    I("s_mov_b64 exec, 0xffff")
    for i in range(16):
        I(f"ds_write_b64 v{vT+6}, a[{aACC+4*i}:{aACC+4*i+1}] offset:{i*128}")
    I("s_mov_b64 exec, -1")
    I(f"v_lshlrev_b32 v{vT+7}, 3, v0")
    I(f"v_add_u32 v{vT+8}, {RED}, v{vT+7}")
    I(f"s_lshl_b32 s{sT0}, s{sGRP}, 3")
    I(f"s_add_u32 s{sT0}, s{sT0}, s{sS}")
    I(f"s_lshl_b32 s{sT1}, s{sT0}, 11")
    I(f"s_add_u32 s{sT1}, s{sT1}, {ODOFF}")
    I(f"v_add_u32 v{vA0}, s{sT1}, v{vT+7}")
    I("s_waitcnt lgkmcnt(0)")
    I("s_barrier")
    vR = vRING
    for w in range(4):
        I(f"ds_read_b64 v[{vR+2*w}:{vR+2*w+1}], v{vT+8} offset:{w*2048}")
    I(f"ds_read_b128 v[{vR+8}:{vR+11}], v{vT+2} offset:{M_LS - MISC}")
    I("s_waitcnt lgkmcnt(1)")
    for h in range(2):
        I(f"v_add_f32 v{vR+h}, v{vR+h}, v{vR+2+h}")
        I(f"v_add_f32 v{vR+4+h}, v{vR+4+h}, v{vR+6+h}")
        I(f"v_add_f32 v{vR+h}, v{vR+h}, v{vR+4+h}")
    I(f"v_cvt_pk_bf16_f32 v{vR+12}, v{vR}, v{vR+1}")
    I(f"v_mov_b32 v{vR+13}, s{sTAG}")
    vm(f"global_store_dwordx2 v{vA0}, v[{vR+12}:{vR+13}], s[{sWS}:{sWS+1}] sc1")
    I("s_waitcnt lgkmcnt(0)")
    I(f"v_add_f32 v{vR+8}, v{vR+8}, v{vR+9}")
    I(f"v_add_f32 v{vR+10}, v{vR+10}, v{vR+11}")
    I(f"v_add_f32 v{vR+8}, v{vR+8}, v{vR+10}")
    I(f"v_and_b32 v{vR+9}, 2, v{vLANE}")
    I(f"v_cmp_eq_u32 vcc, 0, v{vR+9}")
    I(f"v_cndmask_b32 v{vR+14}, v{vR+8}, v{vM}, vcc")
    I(f"v_mov_b32 v{vR+15}, s{sTAG}")
    I(f"s_lshl_b32 s{sT1}, s{sT0}, 5")
    I(f"s_add_u32 s{sT1}, s{sT1}, {OSOFF}")
    I(f"v_lshlrev_b32 v{vR+9}, 3, v{vLANE}")
    I(f"v_add_u32 v{vR+9}, s{sT1}, v{vR+9}")
    I(f"s_cmp_eq_u32 s{sWAVE}, 0")
    I("s_cbranch_scc0 L_nostat")
    I("s_mov_b64 exec, 0xf")
    I(f"global_store_dwordx2 v{vR+9}, v[{vR+14}:{vR+15}], s[{sWS}:{sWS+1}] sc1")
    I("s_mov_b64 exec, -1")
    G.L("L_nostat")
    stamp()
    I(f"s_cmp_eq_u32 s{sC}, 7")
    I("s_cbranch_scc1 L_fin")
    vO = vRING + 16
    vSt = vRING + 32
    I(f"s_lshl_b32 s{sT1}, s{sGRP}, 14")
    I(f"s_add_u32 s{sT1}, s{sT1}, {ODOFF}")
    I(f"v_add_u32 v{vA0}, s{sT1}, v{vT+7}")
    I(f"v_add_u32 v{vT+8}, 0x2000, v{vA0}")
    I(f"s_lshl_b32 s{sT1}, s{sGRP}, 8")
    I(f"s_add_u32 s{sT1}, s{sT1}, {OSOFF}")
    I(f"v_and_b32 v{vT+6}, 31, v{vLANE}")
    I(f"v_lshlrev_b32 v{vT+6}, 3, v{vT+6}")
    I(f"v_add_u32 v{vT+6}, s{sT1}, v{vT+6}")
    def o_loads():
        I(f"global_load_dwordx2 v[{vSt}:{vSt+1}], v{vT+6}, s[{sWS}:{sWS+1}] sc1")
        for k in range(8):
            a = vA0 if k < 4 else vT+8
            I(f"global_load_dwordx2 v[{vO+2*k}:{vO+2*k+1}], v{a}, s[{sWS}:{sWS+1}] offset:{(k & 3)*2048 - 4096} sc1")
    I(f"v_add_u32 v{vA0}, 0x1000, v{vA0}")
    I(f"v_add_u32 v{vT+8}, 0x1000, v{vT+8}")
    o_loads()
    I("s_waitcnt vmcnt(0)")
    poll("o", o_loads, lambda: tagcheck([vSt+1] + [vO+2*k+1 for k in range(8)]))
    vW0 = vSt + 2
    I(f"v_mov_b32_dpp v{vW0}, v{vSt} row_shr:2 row_mask:0xf bank_mask:0xf")
    I(f"v_mov_b32 v{vW0+1}, v{vW0}")
    for ror in (4, 8):
        I(f"v_max_f32_dpp v{vW0+1}, v{vW0+1}, v{vW0+1} row_ror:{ror} row_mask:0xf bank_mask:0xf")
    I(f"v_mov_b32 v{vW0+2}, v{vW0+1}")
    I(f"v_permlane16_swap_b32 v{vW0+1}, v{vW0+2}")
    I(f"v_max_f32 v{vW0+1}, v{vW0+1}, v{vW0+2}")
    I(f"v_sub_f32 v{vW0}, v{vW0}, v{vW0+1}")
    I(f"v_exp_f32 v{vW0}, v{vW0}")
    I(f"v_mul_f32 v{vW0+1}, v{vW0}, v{vSt}")
    for ror in (4, 8):
        I(f"v_add_f32_dpp v{vW0+1}, v{vW0+1}, v{vW0+1} row_ror:{ror} row_mask:0xf bank_mask:0xf")
    I(f"v_mov_b32 v{vW0+2}, v{vW0+1}")
    I(f"v_permlane16_swap_b32 v{vW0+1}, v{vW0+2}")
    I(f"v_add_f32 v{vW0+1}, v{vW0+1}, v{vW0+2}")
    I(f"v_rcp_f32 v{vW0+1}, v{vW0+1}")
    I(f"v_mul_f32 v{vW0}, v{vW0}, v{vW0+1}")
    for k in range(8):
        for h in range(2):
            I(f"v_readlane_b32 s{sWT+2*k+h}, v{vW0}, {4*k+2+h}")
    vo0, vo1 = vW0+3, vW0+4
    for k in range(8):
        I(f"v_lshlrev_b32 v{vW0+5}, 16, v{vO+2*k}")
        I(f"v_and_b32 v{vW0+6}, 0xffff0000, v{vO+2*k}")
        if k == 0:
            I(f"v_mul_f32 v{vo0}, s{sWT}, v{vW0+5}")
            I(f"v_mul_f32 v{vo1}, s{sWT+1}, v{vW0+6}")
        else:
            I(f"v_fmac_f32 v{vo0}, s{sWT+2*k}, v{vW0+5}")
            I(f"v_fmac_f32 v{vo1}, s{sWT+2*k+1}, v{vW0+6}")
    I(f"v_cvt_pk_bf16_f32 v{vo0}, v{vo0}, v{vo1}")
    I(f"v_lshrrev_b32 v{vW0+5}, 4, v0")
    I(f"v_and_b32 v{vW0+6}, 7, v{vW0+5}")
    I(f"v_lshrrev_b32 v{vW0+5}, 3, v{vW0+5}")
    I(f"v_lshl_add_u32 v{vW0+6}, v{vW0+5}, 7, v{vW0+6}")
    I(f"v_and_b32 v{vW0+5}, 15, v0")
    I(f"v_lshl_add_u32 v{vW0+6}, v{vW0+5}, 3, v{vW0+6}")
    img_pos(vW0+5, vW0+6, vW0+7)
    I(f"v_add_u32 v{vW0+5}, {OI}, v{vW0+5}")
    I(f"ds_write_b16 v{vW0+5}, v{vo0}")
    I(f"ds_write_b16_d16_hi v{vW0+5}, v{vo0} offset:512")
    I("s_waitcnt lgkmcnt(0)")
    I("s_barrier")
    vOA = vRING + 64
    for s in range(16):
        I(f"ds_read_b128 v[{vOA+4*s}:{vOA+4*s+3}], v{vWB+2} offset:{s*64}")
        if s == 11: I("s_waitcnt lgkmcnt(4)")
    for s in range(16):
        if s == 0: I("s_waitcnt lgkmcnt(8)")
        if s == 8: I("s_waitcnt lgkmcnt(0)")
        c = "0" if s == 0 else f"v[{vYA}:{vYA+3}]"
        I(f"v_mfma_f32_16x16x32_bf16 v[{vYA}:{vYA+3}], v[{vOA+4*s}:{vOA+4*s+3}], a[{aWO+4*s}:{aWO+4*s+3}], {c}")
    I(f"v_sub_f32 v{vW0}, v{vYA}, v{vYB}")
    I(f"v_fma_f32 v{vW0}, v{vW0}, s{sG}, v{vYB}")
    I(f"v_mov_b32 v{vW0+1}, s{sTAG}")
    I(f"s_lshl_b32 s{sT0}, s{sB}, 3")
    I(f"s_add_u32 s{sT0}, s{sT0}, s{sC}")
    I(f"s_lshl_b32 s{sT0}, s{sT0}, 12")
    I(f"s_lshl_b32 s{sT1}, s{sWAVE}, 7")
    I(f"s_add_u32 s{sT0}, s{sT0}, s{sT1}")
    I(f"s_add_u32 s{sT0}, s{sT0}, {YOFF}")
    I(f"s_lshl_b32 s{sT1}, s{sHKV}, 9")
    I(f"s_add_u32 s{sT1}, s{sT1}, s{sT0}")
    I(f"v_and_b32 v{vW0+2}, 15, v{vLANE}")
    I(f"v_lshlrev_b32 v{vW0+2}, 3, v{vW0+2}")
    I(f"v_add_u32 v{vW0+3}, s{sT1}, v{vW0+2}")
    I("s_mov_b64 exec, 0xffff")
    I(f"global_store_dwordx2 v{vW0+3}, v[{vW0}:{vW0+1}], s[{sWS}:{sWS+1}] sc1")
    I("s_mov_b64 exec, -1")
    I(f"s_sub_u32 s{sT1}, 7, s{sB}")
    I(f"s_cmp_eq_u32 s{sS}, s{sT1}")
    I("s_cbranch_scc0 L_fin")
    I(f"v_lshrrev_b32 v{vW0+3}, 4, v{vLANE}")
    I(f"v_lshl_add_u32 v{vW0+3}, v{vW0+3}, 9, v{vW0+2}")
    I(f"v_add_u32 v{vW0+3}, s{sT0}, v{vW0+3}")
    vY = vO
    def y_loads():
        I(f"global_load_dwordx2 v[{vY}:{vY+1}], v{vW0+3}, s[{sWS}:{sWS+1}] sc1")
        I(f"global_load_dwordx2 v[{vY+2}:{vY+3}], v{vW0+3}, s[{sWS}:{sWS+1}] offset:2048 sc1")
    y_loads()
    I("s_waitcnt vmcnt(0)")
    poll("y", y_loads, lambda: tagcheck([vY+1, vY+3]))
    I(f"v_add_f32 v{vY}, v{vY}, v{vY+2}")
    xsum(vY, vY+1)
    I(f"v_cvt_pk_bf16_f32 v{vY}, v{vY}, v{vY}")
    I(f"s_mul_i32 s{sT0}, s{sB}, 896")
    I(f"s_lshl_b32 s{sT1}, s{sC}, 7")
    I(f"s_add_u32 s{sT0}, s{sT0}, s{sT1}")
    I(f"s_lshl_b32 s{sT1}, s{sWAVE}, 5")
    I(f"s_add_u32 s{sT0}, s{sT0}, s{sT1}")
    I(f"v_lshrrev_b32 v{vY+2}, 2, v{vW0+2}")
    I("s_mov_b64 exec, 0xffff")
    I(f"buffer_store_short v{vY}, v{vY+2}, s[{rOUT}:{rOUT+3}], s{sT0} offen")
    I("s_mov_b64 exec, -1")
    I("s_cmp_eq_u32 s2, 15")
    I("s_cbranch_scc0 L_fin")
    I(f"s_cmp_eq_u32 s{sWAVE}, 0")
    I("s_cbranch_scc0 L_fin")
    I(f"v_mov_b32 v{vY}, s{sTAG}")
    I(f"v_mov_b32 v{vY+1}, {EPOCH}")
    I("s_mov_b64 exec, 1")
    I(f"global_store_dword v{vY+1}, v{vY}, s[{sWS}:{sWS+1}] sc1")
    I("s_mov_b64 exec, -1")
    G.L("L_fin")
    if stamps:
        stamp()
        I(f"s_cmp_eq_u32 s{sWAVE}, 0")
        I("s_cbranch_scc0 L_end")
        I(f"s_mul_i32 s{sT0}, s2, 64")
        I(f"s_add_u32 s{sT0}, s{sT0}, {STAMP_OFF}")
        I(f"v_mov_b32 v{vT}, s{sT0}")
        I("s_mov_b64 exec, 1")
        for k in range(8):
            I(f"v_mov_b32 v{vT+2}, s{sSTAMP+2*k}")
            I(f"v_mov_b32 v{vT+3}, s{sSTAMP+2*k+1}")
            I(f"global_store_dwordx2 v{vT}, v[{vT+2}:{vT+3}], s[{sWS}:{sWS+1}] offset:{8*k}")
    G.L("L_end")
    I("s_endpgm")
    G.L("L_code_end")
    return G

HEADER = open("gated_mix__gqa_block_cached__dense_activation_relu__decode.s.ref").read().split("; Override launch")[0]

def emit(path, **kw):
    G = gen(**kw)
    body, nn = G.text()
    src = HEADER + f"""; Override launch geometry by editing the next line (default: block=256,
; grid=ceil(out_elems/256), lds=0). Harness parses it; keep it on one line.
; @launch grid=(256,1,1) block=(256,1,1) lds={LDS_BYTES}
.amdgcn_target "amdgcn-amd-amdhsa--gfx950"
.text
.globl {NAME}
.p2align 8
.type {NAME},@function
{NAME}:
{body}
.section .rodata,"a"
.p2align 6
.amdhsa_kernel {NAME}
  .amdhsa_next_free_vgpr 512
  .amdhsa_next_free_sgpr 102
  .amdhsa_accum_offset 256
  .amdhsa_group_segment_fixed_size 0
  .amdhsa_kernarg_size 96
  .amdhsa_user_sgpr_count 2
  .amdhsa_user_sgpr_kernarg_segment_ptr 1
  .amdhsa_system_sgpr_workgroup_id_x 1
.end_amdhsa_kernel
"""
    open(path, "w").write(src)
    return nn

if __name__ == "__main__":
    out = sys.argv[1] if len(sys.argv) > 1 else "k.s"
    kw = eval("dict(" + (sys.argv[2] if len(sys.argv) > 2 else "") + ")")
    print("nops inserted:", emit(out, **kw))
```

```python
import sys, struct, math
from asmlib import Gen

NAME = "gated_mix__gqa_block_cached__dense_activation_relu__decode_kernel"

QOFF, HOFF, ODOFF, OSOFF, YOFF, EPOCH = 0x0, 0x20000, 0x40000, 0xC0000, 0xD0000, 0xF8000
STAMP_OFF = 200 << 20
WOI, W2I = 0, 65536
ST0, ST1, XI, MISC = 131072, 145408, 159744, 163328
QI, OI, HI, RED = ST0, ST0 + 1024, ST0 + 2048, ST0 + 4096
M_TAG, M_G, M_MX, M_LS = MISC, MISC + 4, MISC + 16, MISC + 64
LDS_BYTES = 163840
sX, sK, sV, sWQ, sWO, sBX, sW1, sW2, sGW, sOUT, sDBG, sWS = 4, 6, 8, 10, 12, 14, 16, 18, 20, 22, 24, 26
rK, rV, rW, rX, rWO, rW2, rOUT, rG = 28, 32, 36, 40, 44, 48, 56, 60
sOUTB, sBSTR, sLO, sTASK = 52, 53, 54, 55
sWAVE = 3
sGRP, sS, sB, sHKV, sC, sT0, sLDSW, sKV, sTAG, sG, sSELLO, sSELHI, sSC = 64, 65, 66, 67, 68, 69, 70, 71, 72, 73, 74, 75, 76
sSTR, sSTG, sVB = 77, 78, 79
sSTAMP = 80
sP0, sP1, sT1, sT2 = 96, 98, 100, 101
sWT = 4
vLANE = 1
vKD = 2
vKA = 10
vVO = 14
vA0 = 15
vT = 16
vS = 32
vRD = 48
vPT = 64
vRING = 80
vP = 240
aACC, aQ, aKT, aV = 0, 64, 96, 160
aWO, aW2 = 64, 128
vG_, vN_ = 20, 21

def f32(x):
    return "0x%08x" % struct.unpack("<I", struct.pack("<f", x))[0]

def gen(W=16, stamps=False, vpre=0, code_pf=True, spin=100000, wf='nt', rbar=True, kfirst=2, cover=16):
    G = Gen()
    I, vm = G.I, G.vm
    nst = [0]
    def stamp():
        if stamps:
            k = nst[0]; nst[0] += 1
            assert k < 8
            I(f"s_memrealtime s[{sSTAMP+2*k}:{sSTAMP+2*k+1}]")
            I("s_waitcnt lgkmcnt(0)")
    def srd(r, p, size):
        I(f"s_mov_b32 s{r}, s{p}")
        I(f"s_and_b32 s{r+1}, s{p+1}, 0xffff")
        I(f"s_mov_b32 s{r+2}, {size}")
        I(f"s_mov_b32 s{r+3}, 0x20000")
    def xsum(v, t, op="v_add_f32"):
        I(f"v_mov_b32 v{t}, v{v}")
        I(f"v_permlane16_swap_b32 v{v}, v{t}")
        I(f"{op} v{v}, v{v}, v{t}")
        I(f"v_mov_b32 v{t}, v{v}")
        I(f"v_permlane32_swap_b32 v{v}, v{t}")
        I(f"{op} v{v}, v{v}, v{t}")
    def poll(name, reload, check):
        I(f"s_mov_b32 s{sT2}, 0")
        G.L(f"L_{name}_chk")
        check()
        I(f"s_cbranch_vccz L_{name}_ok")
        I(f"s_add_u32 s{sT2}, s{sT2}, 1")
        I(f"s_cmp_gt_u32 s{sT2}, {spin}")
        I(f"s_cbranch_scc1 L_{name}_ok")
        reload()
        I("s_waitcnt vmcnt(0)")
        I(f"s_branch L_{name}_chk")
        G.L(f"L_{name}_ok")
    def tagcheck(regs):
        I(f"v_cmp_ne_u32 vcc, s{sTAG}, v{regs[0]}")
        for r in regs[1:]:
            I(f"v_cmp_ne_u32 s[{sP0}:{sP0+1}], s{sTAG}, v{r}")
            I(f"s_or_b64 vcc, vcc, s[{sP0}:{sP0+1}]")

    if stamps:
        I(f"s_memrealtime s[{sSTAMP}:{sSTAMP+1}]"); nst[0] = 1
    I("s_cmp_ge_u32 s2, 256")
    I("s_cbranch_scc1 L_end")
    I("s_load_dwordx16 s[4:19], s[0:1], 0")
    I("s_load_dwordx8 s[20:27], s[0:1], 64")
    I(f"v_lshrrev_b32 v{vT}, 6, v0")
    I(f"v_and_b32 v{vLANE}, 63, v0")
    I(f"v_readfirstlane_b32 s{sWAVE}, v{vT}")
    if code_pf:
        I(f"s_cmp_eq_u32 s{sWAVE}, 3")
        I("s_cbranch_scc0 L_nopf")
        I(f"s_getpc_b64 s[{sP0}:{sP0+1}]")
        G.L("L_pc")
        I(f"s_sub_u32 s{sP0}, s{sP0}, L_pc-{NAME}")
        I(f"s_subb_u32 s{sP0+1}, s{sP0+1}, 0")
        I(f"v_lshlrev_b32 v{vT+1}, 7, v{vLANE}")
        for k in range(3):
            I(f"v_min_u32 v{vT+2}, L_code_end-{NAME}-4, v{vT+1}")
            I(f"global_load_dword v{vT+3}, v{vT+2}, s[{sP0}:{sP0+1}]")
            if k < 2: I(f"v_add_u32 v{vT+1}, 0x2000, v{vT+1}")
        G.L("L_nopf")
    I(f"s_lshr_b32 s{sGRP}, s2, 3")
    I(f"s_and_b32 s{sS}, s2, 7")
    I(f"s_lshr_b32 s{sB}, s{sGRP}, 3")
    I(f"s_and_b32 s{sHKV}, s{sGRP}, 7")
    I(f"s_add_u32 s{sC}, s{sS}, s{sHKV}")
    I(f"s_and_b32 s{sC}, s{sC}, 7")
    I(f"s_lshl_b32 s{sLDSW}, s{sWAVE}, 15")
    I(f"s_lshl_b32 s{sKV}, s{sGRP}, 21")
    I(f"s_lshl_b32 s{sT0}, s{sC}, 18")
    I(f"s_add_u32 s{sKV}, s{sKV}, s{sT0}")
    I(f"s_lshl_b32 s{sT0}, s{sWAVE}, 13")
    I(f"s_add_u32 s{sKV}, s{sKV}, s{sT0}")
    I(f"v_lshrrev_b32 v{vT}, 5, v{vLANE}")
    I(f"v_and_b32 v{vT+1}, 31, v{vLANE}")
    I(f"v_lshlrev_b32 v{vT+2}, 2, v{vT}")
    I(f"v_xor_b32 v{vT+1}, v{vT+1}, v{vT+2}")
    I(f"v_lshlrev_b32 v{vT+1}, 4, v{vT+1}")
    I(f"v_lshl_or_b32 v{vKD}, v{vT}, 9, v{vT+1}")
    for i in range(1, 8):
        I(f"v_xor_b32 v{vKD+i}, {(8*(i&1) + (i>>1)) << 4}, v{vKD}")
    I(f"v_lshrrev_b32 v{vG_}, 4, v{vLANE}")
    I(f"v_and_b32 v{vN_}, 15, v{vLANE}")
    I("s_waitcnt lgkmcnt(0)")
    I(f"s_load_dword s{sTAG}, s[{sWS}:{sWS+1}], {EPOCH}")
    srd(rK, sK, 0x4000000)
    I(f"s_mov_b32 s{sTASK}, 0")
    I(f"s_cmp_eq_u32 s{sWAVE}, 0")
    I("s_cbranch_scc1 L_roleQ")
    I(f"s_cmp_eq_u32 s{sWAVE}, 1")
    I("s_cbranch_scc1 L_roleH")
    I(f"s_cmp_eq_u32 s{sWAVE}, 2")
    I("s_cbranch_scc0 L_roleDone")
    srd(rG, sGW, 896)
    I(f"s_mul_i32 s{sT0}, s{sB}, 896")
    I(f"s_add_u32 s{rX}, s{sX}, s{sT0}")
    I(f"s_addc_u32 s{rX+1}, s{sX+1}, 0")
    I(f"s_and_b32 s{rX+1}, s{rX+1}, 0xffff")
    I(f"s_mov_b32 s{rX+2}, 896")
    I(f"s_mov_b32 s{rX+3}, 0x20000")
    I(f"v_lshlrev_b32 v{vT}, 4, v{vLANE}")
    I(f"buffer_load_dwordx4 v[{vRING}:{vRING+3}], v{vT}, s[{rX}:{rX+3}], 0 offen")
    I(f"buffer_load_dwordx4 v[{vRING+4}:{vRING+7}], v{vT}, s[{rG}:{rG+3}], 0 offen")
    I(f"s_mov_b32 s{sTASK}, 2")
    I("s_branch L_roleDone")
    G.L("L_roleH")
    I(f"s_and_b32 s{sT0}, s{sS}, 1")
    I(f"s_cmp_eq_u32 s{sT0}, 0")
    I("s_cbranch_scc0 L_roleDone")
    I(f"s_cmp_lt_u32 s{sGRP}, 28")
    I("s_cbranch_scc0 L_roleDone")
    I(f"s_and_b32 s{sT0}, s{sGRP}, 28")
    I(f"s_lshr_b32 s{sT1}, s{sS}, 1")
    I(f"s_add_u32 s{sT0}, s{sT0}, s{sT1}")
    I(f"s_lshl_b32 s{sT0}, s{sT0}, 2")
    I(f"s_and_b32 s{sT1}, s{sGRP}, 3")
    I(f"s_add_u32 s{sT0}, s{sT0}, s{sT1}")
    I(f"s_lshl_b32 s{sT1}, s{sT0}, 5")
    I(f"s_add_u32 s{rW}, s{sW1}, s{sT1}")
    I(f"s_addc_u32 s{rW+1}, s{sW1+1}, 0")
    I(f"s_sub_u32 s{rW+2}, {448*3584}, s{sT1}")
    I(f"s_movk_i32 s{sSTR}, 3584")
    I(f"s_mov_b32 s{sSTG}, {ST1}")
    I(f"s_lshl_b32 s{sOUTB}, s{sT0}, 7")
    I(f"s_add_u32 s{sOUTB}, s{sOUTB}, {HOFF}")
    I(f"s_movk_i32 s{sBSTR}, {1792*8}")
    I(f"s_mov_b32 s{sLO}, 0")
    I("s_branch L_taskLoads")
    G.L("L_roleQ")
    I(f"s_lshl_b32 s{sT0}, s{sS}, 2")
    I(f"s_add_u32 s{sT0}, s{sT0}, s{sB}")
    I(f"s_lshl_b32 s{sT1}, s{sT0}, 5")
    I(f"s_lshl_b32 s{sT2}, s{sHKV}, 10")
    I(f"s_add_u32 s{sT1}, s{sT1}, s{sT2}")
    I(f"s_add_u32 s{rW}, s{sWQ}, s{sT1}")
    I(f"s_addc_u32 s{rW+1}, s{sWQ+1}, 0")
    I(f"s_sub_u32 s{rW+2}, {448*8192}, s{sT1}")
    I(f"s_movk_i32 s{sSTR}, 8192")
    I(f"s_mov_b32 s{sSTG}, {ST0}")
    I(f"s_lshl_b32 s{sOUTB}, s{sT0}, 7")
    I(f"s_lshl_b32 s{sT2}, s{sHKV}, 14")
    I(f"s_add_u32 s{sOUTB}, s{sOUTB}, s{sT2}")
    I(f"s_movk_i32 s{sBSTR}, 4096")
    I(f"s_mov_b32 s{sLO}, 0xff800000")
    G.L("L_taskLoads")
    I(f"s_and_b32 s{rW+1}, s{rW+1}, 0xffff")
    I(f"s_mov_b32 s{rW+3}, 0x20000")
    srd(rX, sX, 3584)
    I(f"v_lshlrev_b32 v{vT}, 4, v{vLANE}")
    I(f"s_mov_b32 m0, {XI}")
    for i in range(4):
        if i == 3: I("s_mov_b32 exec_hi, 0")
        I(f"buffer_load_dwordx4 v{vT}, s[{rX}:{rX+3}], 0 offen offset:{i*1024} {wf} lds")
    I("s_mov_b64 exec, -1")
    I(f"v_lshrrev_b32 v{vT+1}, 1, v{vLANE}")
    I(f"v_mul_lo_u32 v{vT+1}, v{vT+1}, s{sSTR}")
    I(f"v_and_b32 v{vT+2}, 1, v{vLANE}")
    I(f"v_lshl_add_u32 v{vT+1}, v{vT+2}, 4, v{vT+1}")
    I(f"s_lshl_b32 s{sT1}, s{sSTR}, 5")
    I(f"s_mov_b32 s{sT0}, 0")
    for i in range(14):
        I(f"s_add_u32 m0, s{sSTG}, {i*1024}")
        if i: I(f"s_add_u32 s{sT0}, s{sT0}, s{sT1}")
        I(f"buffer_load_dwordx4 v{vT+1}, s[{rW}:{rW+3}], s{sT0} offen {wf} lds")
    I(f"s_mov_b32 s{sTASK}, 1")
    G.L("L_roleDone")
    if rbar: I("s_barrier")
    G.vm_n = 0; G.vm_bound = 18
    kidx = {}
    def k_tile(t, win=True):
        I(f"s_add_u32 s{sT0}, s{sKV}, {t*32768}")
        for i in range(8):
            if i % 4 == 0:
                if i == 4: I(f"s_add_u32 s{sT0}, s{sT0}, 4096")
                I(f"s_add_u32 m0, s{sLDSW}, {(t & 3)*8192 + (i>>2)*4096}")
            if win: G.window(W)
            kidx[t] = vm(f"buffer_load_dwordx4 v{vKD+i}, s[{rK}:{rK+3}], s{sT0} offen offset:{(i&3)*1024} nt lds")
    vidx = {}
    def v_reg(j):
        return ("a", aV + 4*j) if j < 24 else ("v", vRING + 4*(j-24))
    vcur = [None]; vnext = [0]
    def v_loads(n):
        for _ in range(min(n, 64 - vnext[0])):
            j = vnext[0]; vnext[0] += 1
            beta, h, tp, r = j >> 4, (j >> 3) & 1, (j >> 2) & 1, j & 3
            base = (2*beta + tp)*32768 + (r >> 1)*4096
            if vcur[0] != base:
                I(f"s_add_u32 s{sVB}, s{sKV}, {base}")
                vcur[0] = base
            G.window(W)
            f, b0 = v_reg(j)
            vidx[j] = vm(f"buffer_load_dwordx4 {f}[{b0}:{b0+3}], v{vVO}, s[{rV}:{rV+3}], s{sVB} offen offset:{(r&1)*2048 + h*256} nt")
    for t in range(kfirst): k_tile(t, win=False)
    srd(rV, sV, 0x4000000)
    I(f"v_lshlrev_b32 v{vVO}, 9, v{vG_}")
    I(f"v_lshl_or_b32 v{vVO}, v{vN_}, 4, v{vVO}")
    I(f"v_and_b32 v{vT+6}, 3, v{vN_}")
    I(f"v_lshrrev_b32 v{vT+7}, 2, v{vN_}")
    I(f"v_lshl_or_b32 v{vT+6}, v{vT+6}, 2, v{vT+7}")
    I(f"v_xor_b32 v{vT+7}, v{vG_}, v{vN_}")
    I(f"v_lshlrev_b32 v{vT+7}, 4, v{vT+7}")
    I(f"v_lshl_or_b32 v{vT+6}, v{vT+6}, 9, v{vT+7}")
    I(f"v_add_u32 v{vKA}, s{sLDSW}, v{vT+6}")
    for j in range(1, 4):
        I(f"v_xor_b32 v{vKA+j}, {j << 6}, v{vKA}")
    I(f"s_mov_b32 s{sSELLO}, 0x05040100")
    I(f"s_mov_b32 s{sSELHI}, 0x07060302")
    I(f"s_mov_b32 s{sSC}, {f32(math.log2(math.e)/16.0)}")
    I(f"s_cmp_eq_u32 s{sC}, 7")
    I(f"s_cselect_b32 s{sT1}, 0, {4096*896}")
    I(f"s_cselect_b32 s{sT2}, 0, {1792*896}")
    I(f"s_mov_b32 s{rWO}, s{sWO}")
    I(f"s_and_b32 s{rWO+1}, s{sWO+1}, 0xffff")
    I(f"s_mov_b32 s{rWO+2}, s{sT1}")
    I(f"s_mov_b32 s{rWO+3}, 0x20000")
    I(f"s_mov_b32 s{rW2}, s{sW2}")
    I(f"s_and_b32 s{rW2+1}, s{sW2+1}, 0xffff")
    I(f"s_mov_b32 s{rW2+2}, s{sT2}")
    I(f"s_mov_b32 s{rW2+3}, 0x20000")
    srd(rOUT, sOUT, 3584)
    I("s_waitcnt lgkmcnt(0)")
    I(f"s_add_u32 s{sTAG}, s{sTAG}, 1")
    I(f"s_cmp_eq_u32 s{sTASK}, 0")
    I("s_cbranch_scc1 L_roleEnd")
    I(f"s_waitcnt vmcnt({8*kfirst})")
    I(f"s_cmp_eq_u32 s{sTASK}, 2")
    I("s_cbranch_scc1 L_gate")
    vA, vB, vC = vRING, vRING + 56, vT + 8
    I(f"v_and_b32 v{vT}, 3, v{vLANE}")
    I(f"v_mul_u32_u24 v{vT}, 896, v{vT}")
    I(f"v_lshl_add_u32 v{vT}, v{vG_}, 3, v{vT}")
    I(f"v_add_u32 v{vT}, {XI}, v{vT}")
    I(f"v_lshlrev_b32 v{vT+1}, 3, v{vLANE}")
    I(f"v_add_u32 v{vT+1}, s{sSTG}, v{vT+1}")
    def task_reads(s):
        I(f"ds_read_b64 v[{vA+4*s}:{vA+4*s+1}], v{vT} offset:{s*64}")
        I(f"ds_read_b64 v[{vA+4*s+2}:{vA+4*s+3}], v{vT} offset:{s*64+32}")
        I(f"ds_read_b64_tr_b16 v[{vB+4*s}:{vB+4*s+1}], v{vT+1} offset:{s*1024}")
        I(f"ds_read_b64_tr_b16 v[{vB+4*s+2}:{vB+4*s+3}], v{vT+1} offset:{s*1024+512}")
    for s in range(3): task_reads(s)
    for s in range(14):
        I(f"s_waitcnt lgkmcnt({4*min(13 - s, 2)})")
        c = "0" if s == 0 else f"v[{vC}:{vC+3}]"
        I(f"v_mfma_f32_16x16x32_bf16 v[{vC}:{vC+3}], v[{vA+4*s}:{vA+4*s+3}], v[{vB+4*s}:{vB+4*s+3}], {c}")
        if s + 3 < 14: task_reads(s + 3)
    I(f"v_lshlrev_b32 v{vT+2}, 3, v{vN_}")
    I(f"v_add_u32 v{vT+2}, s{sOUTB}, v{vT+2}")
    I(f"v_mov_b32 v{vT+13}, s{sTAG}")
    I(f"v_mov_b32 v{vT+15}, s{sTAG}")
    I("s_mov_b64 exec, 0xffff")
    for r in range(4):
        d = vT + 12 + 2*(r & 1)
        I(f"v_max_f32 v{d}, s{sLO}, v{vC+r}")
        I(f"v_cvt_pk_bf16_f32 v{d}, v{d}, v{d}")
        I(f"global_store_dwordx2 v{vT+2}, v[{d}:{d+1}], s[{sWS}:{sWS+1}] sc1")
        if r < 3: I(f"v_add_u32 v{vT+2}, s{sBSTR}, v{vT+2}")
    I("s_mov_b64 exec, -1")
    I(f"s_cmp_eq_u32 s{sWAVE}, 0")
    I("s_cbranch_scc0 L_roleEnd")
    I(f"v_mov_b32 v{vT}, {M_TAG}")
    I(f"v_mov_b32 v{vT+1}, s{sTAG}")
    I(f"ds_write_b32 v{vT}, v{vT+1}")
    I("s_branch L_roleEnd")
    G.L("L_gate")
    xa, ga = vRING, vRING + 4
    I(f"v_mov_b32 v{vT}, 0")
    for j in range(4):
        I(f"v_lshlrev_b32 v{vT+1}, 16, v{xa+j}")
        I(f"v_lshlrev_b32 v{vT+2}, 16, v{ga+j}")
        I(f"v_and_b32 v{vT+3}, 0xffff0000, v{xa+j}")
        I(f"v_and_b32 v{vT+8}, 0xffff0000, v{ga+j}")
        I(f"v_fmac_f32 v{vT}, v{vT+1}, v{vT+2}")
        I(f"v_fmac_f32 v{vT}, v{vT+3}, v{vT+8}")
    for ror in (8, 4, 2, 1):
        I(f"v_add_f32_dpp v{vT}, v{vT}, v{vT} row_ror:{ror} row_mask:0xf bank_mask:0xf")
    xsum(vT, vT+1)
    I(f"v_mul_f32 v{vT}, {f32(-math.log2(math.e))}, v{vT}")
    I(f"v_exp_f32 v{vT}, v{vT}")
    I(f"v_add_f32 v{vT}, 1.0, v{vT}")
    I(f"v_rcp_f32 v{vT}, v{vT}")
    I(f"v_mov_b32 v{vT+1}, {M_G}")
    I(f"ds_write_b32 v{vT+1}, v{vT}")
    G.L("L_roleEnd")
    stamp()
    G.vm_bound = 18 + 8*kfirst + 4
    for t in range(kfirst, 4): k_tile(t)
    v_loads(vpre)
    I("s_waitcnt lgkmcnt(0)")
    I("s_barrier")
    I(f"v_mov_b32 v{vT}, {MISC}")
    I(f"ds_read_b64 v[{vT+2}:{vT+3}], v{vT}")
    I(f"s_lshl_b32 s{sT0}, s{sHKV}, 2")
    I(f"s_add_u32 s{sT0}, s{sT0}, s{sB}")
    I(f"s_lshl_b32 s{sT0}, s{sT0}, 12")
    I(f"s_lshl_b32 s{sT1}, s{sWAVE}, 10")
    I(f"s_add_u32 s{sT0}, s{sT0}, s{sT1}")
    I(f"v_lshlrev_b32 v{vA0}, 4, v{vLANE}")
    I(f"v_add_u32 v{vA0}, s{sT0}, v{vA0}")
    vq = vT + 8
    qload = f"global_load_dwordx4 v[{vq}:{vq+3}], v{vA0}, s[{sWS}:{sWS+1}] offset:{QOFF} sc1"
    qg = vm(qload)
    I("s_waitcnt lgkmcnt(0)")
    I(f"v_readfirstlane_b32 s{sTAG}, v{vT+2}")
    I(f"v_readfirstlane_b32 s{sG}, v{vT+3}")
    v_loads(cover)
    G.vm_wait(qg)
    poll("q", lambda: I(qload), lambda: tagcheck([vq+1, vq+3]))
    stamp()
    I(f"v_perm_b32 v{vq}, v{vq+2}, v{vq}, s{sSELLO}")
    I(f"s_lshl_b32 s{sT1}, s{sWAVE}, 8")
    I(f"v_lshlrev_b32 v{vT}, 2, v{vLANE}")
    I(f"v_add_u32 v{vT}, s{sT1}, v{vT}")
    I(f"v_add_u32 v{vT}, {QI}, v{vT}")
    I(f"ds_write_b32 v{vT}, v{vq}")
    I(f"v_and_b32 v{vT+1}, 1, v{vLANE}")
    I(f"v_lshlrev_b32 v{vT+1}, 9, v{vT+1}")
    I(f"v_lshl_add_u32 v{vT+1}, v{vG_}, 4, v{vT+1}")
    I(f"v_add_u32 v{vT+1}, {QI}, v{vT+1}")
    I("s_waitcnt lgkmcnt(0)")
    I("s_barrier")
    for s in range(8):
        I(f"ds_read_b128 a[{aQ+4*s}:{aQ+4*s+3}], v{vT+1} offset:{s*64}")
    def k_reads(t):
        for s in range(8):
            d = aKT + 32*(t & 1) + 4*s
            I(f"ds_read_b128 a[{d}:{d+3}], v{vKA + (s & 3)} offset:{(t & 3)*8192 + (s >> 2)*256}")
    def qk_mfma(t):
        for s in range(8):
            d = aKT + 32*(t & 1) + 4*s
            c = "0" if s == 0 else f"v[{vS+4*t}:{vS+4*t+3}]"
            I(f"v_mfma_f32_16x16x32_bf16 v[{vS+4*t}:{vS+4*t+3}], a[{d}:{d+3}], a[{aQ+4*s}:{aQ+4*s+3}], {c}")
    I("s_waitcnt lgkmcnt(0)")
    k_reads(0)
    for t in range(4):
        I("s_waitcnt lgkmcnt(0)")
        if t < 3: k_reads(t + 1)
        k_tile(t + 4)
        qk_mfma(t)
    v_loads(16)
    G.vm_wait(kidx[4])
    k_reads(4)
    for t in range(4, 8):
        I("s_waitcnt lgkmcnt(0)")
        if t < 7:
            G.vm_wait(kidx[t + 1])
            k_reads(t + 1)
        qk_mfma(t)
        v_loads(4)
    stamp()
    vM = vT
    I(f"v_max3_f32 v{vM}, v{vS}, v{vS+1}, v{vS+2}")
    for k in range(3, 31, 2):
        I(f"v_max3_f32 v{vM}, v{vM}, v{vS+k}, v{vS+k+1}")
    I(f"v_max_f32 v{vM}, v{vM}, v{vS+31}")
    xsum(vM, vT+1, "v_max_f32")
    I(f"v_and_b32 v{vT+2}, 1, v{vLANE}")
    I(f"v_lshlrev_b32 v{vT+2}, 4, v{vT+2}")
    I(f"s_lshl_b32 s{sT1}, s{sWAVE}, 2")
    I(f"v_add_u32 v{vT+3}, s{sT1}, v{vT+2}")
    I(f"v_add_u32 v{vT+3}, {MISC}, v{vT+3}")
    I(f"v_add_u32 v{vT+2}, {MISC}, v{vT+2}")
    I(f"ds_write_b32 v{vT+3}, v{vM} offset:{M_MX - MISC}")
    I("s_waitcnt lgkmcnt(0)")
    I("s_barrier")
    I(f"ds_read_b128 v[{vT+8}:{vT+11}], v{vT+2} offset:{M_MX - MISC}")
    vWD = vA0
    I(f"v_lshrrev_b32 v{vT+6}, 3, v{vLANE}")
    I(f"v_and_b32 v{vT+7}, 6, v{vT+6}")
    I(f"v_and_b32 v{vT+12}, 7, v{vLANE}")
    I(f"v_xor_b32 v{vT+7}, v{vT+7}, v{vT+12}")
    I(f"v_lshlrev_b32 v{vT+7}, 4, v{vT+7}")
    I(f"v_mul_u32_u24 v{vT+6}, 896, v{vT+6}")
    I(f"v_add_u32 v{vWD}, v{vT+6}, v{vT+7}")
    I(f"s_lshl_b32 s{sT0}, s{sHKV}, 9")
    I(f"s_lshl_b32 s{sT1}, s{sWAVE}, 7")
    I(f"s_add_u32 s{sT0}, s{sT0}, s{sT1}")
    I(f"s_mul_i32 s{sT0}, s{sT0}, 896")
    I(f"s_lshl_b32 s{sT1}, s{sC}, 7")
    I(f"s_add_u32 s{sT0}, s{sT0}, s{sT1}")
    I(f"s_lshl_b32 s{sT2}, s{sWAVE}, 14")
    for i in range(16):
        I(f"s_add_u32 m0, s{sT2}, {WOI + i*1024}")
        if i: I(f"s_add_u32 s{sT0}, s{sT0}, {8*896}")
        G.window(W)
        wlast = vm(f"buffer_load_dwordx4 v{vWD}, s[{rWO}:{rWO+3}], s{sT0} offen {wf} lds")
    I(f"s_mul_i32 s{sT0}, s{sHKV}, 224")
    I(f"s_mul_i32 s{sT2}, s{sWAVE}, 56")
    I(f"s_add_u32 s{sT0}, s{sT0}, s{sT2}")
    I(f"s_mul_i32 s{sT0}, s{sT0}, 896")
    I(f"s_add_u32 s{sT0}, s{sT0}, s{sT1}")
    I(f"s_mul_i32 s{sT2}, s{sWAVE}, {7*1024}")
    for i in range(7):
        I(f"s_add_u32 m0, s{sT2}, {W2I + i*1024}")
        if i: I(f"s_add_u32 s{sT0}, s{sT0}, {8*896}")
        G.window(W)
        wlast = vm(f"buffer_load_dwordx4 v{vWD}, s[{rW2}:{rW2+3}], s{sT0} offen {wf} lds")
    vH = vT + 12
    I(f"s_mul_i32 s{sT0}, s{sB}, 1792")
    I(f"s_mul_i32 s{sT1}, s{sHKV}, 224")
    I(f"s_add_u32 s{sT0}, s{sT0}, s{sT1}")
    I(f"s_mul_i32 s{sT1}, s{sWAVE}, 56")
    I(f"s_add_u32 s{sT0}, s{sT0}, s{sT1}")
    I(f"s_lshl_b32 s{sT0}, s{sT0}, 3")
    I(f"s_add_u32 s{sT0}, s{sT0}, {HOFF}")
    I(f"v_min_u32 v{vA0}, 27, v{vLANE}")
    I(f"v_lshlrev_b32 v{vA0}, 4, v{vA0}")
    I(f"v_add_u32 v{vA0}, s{sT0}, v{vA0}")
    hload = f"global_load_dwordx4 v[{vH}:{vH+3}], v{vA0}, s[{sWS}:{sWS+1}] sc1"
    hg = vm(hload)
    I("s_waitcnt lgkmcnt(0)")
    I(f"v_max3_f32 v{vM}, v{vT+8}, v{vT+9}, v{vT+10}")
    I(f"v_max_f32 v{vM}, v{vM}, v{vT+11}")
    I(f"v_mul_f32 v{vM}, s{sSC}, v{vM}")
    vL = vT + 1
    for k in range(32):
        I(f"v_fma_f32 v{vS+k}, v{vS+k}, s{sSC}, -v{vM}")
    for k in range(32):
        I(f"v_exp_f32 v{vS+k}, v{vS+k}")
    I(f"v_add_f32 v{vL}, v{vS}, v{vS+1}")
    for k in range(2, 32):
        I(f"v_add_f32 v{vL}, v{vL}, v{vS+k}")
    for k in range(16):
        I(f"v_cvt_pk_bf16_f32 v{vP+k}, v{vS+2*k}, v{vS+2*k+1}")
    xsum(vL, vT+6)
    I(f"ds_write_b32 v{vT+3}, v{vL} offset:{M_LS - MISC}")
    def pv(beta, h):
        j0 = beta*16 + h*8
        G.vm_wait(vidx[j0 + 7])
        for c4 in range(4):
            src = []
            for q in range(8):
                f, b0 = v_reg(j0 + q)
                if f == "a":
                    t = vRD + 8*(c4 & 1) + q
                    I(f"v_accvgpr_read_b32 v{t}, a{b0 + c4}")
                    src.append(t)
                else:
                    src.append(b0 + c4)
            for e, sel in ((0, sSELLO), (1, sSELHI)):
                pt = vPT + 8*(c4 & 1) + 4*e
                for i in range(4):
                    I(f"v_perm_b32 v{pt+i}, v{src[2*i+1]}, v{src[2*i]}, s{sel}")
            for e in (0, 1):
                pt = vPT + 8*(c4 & 1) + 4*e
                acc = aACC + 4*(h*8 + 2*c4 + e)
                c = "0" if beta == 0 else f"a[{acc}:{acc+3}]"
                I(f"v_mfma_f32_16x16x32_bf16 a[{acc}:{acc+3}], v[{vP+4*beta}:{vP+4*beta+3}], v[{pt}:{pt+3}], {c}")
    pv(0, 0); pv(0, 1)
    v_loads(8)
    pv(1, 0); pv(1, 1)
    v_loads(8)
    v_loads(64)
    G.vm_wait(hg)
    I("s_mov_b64 exec, 0xfffffff")
    poll("h", lambda: I(hload), lambda: tagcheck([vH+1, vH+3]))
    I(f"v_perm_b32 v{vH}, v{vH+2}, v{vH}, s{sSELLO}")
    def img_pos(dst, row, t):
        I(f"v_lshrrev_b32 v{dst}, 5, v{row}")
        I(f"v_lshlrev_b32 v{dst}, 6, v{dst}")
        I(f"v_bfe_u32 v{t}, v{row}, 2, 2")
        I(f"v_lshl_add_u32 v{dst}, v{t}, 4, v{dst}")
        I(f"v_bfe_u32 v{t}, v{row}, 4, 1")
        I(f"v_lshl_add_u32 v{dst}, v{t}, 3, v{dst}")
        I(f"v_and_b32 v{t}, 3, v{row}")
        I(f"v_lshl_add_u32 v{dst}, v{t}, 1, v{dst}")
    I(f"s_mul_i32 s{sT1}, s{sWAVE}, 56")
    I(f"v_lshlrev_b32 v{vT+6}, 1, v{vLANE}")
    I(f"v_add_u32 v{vT+6}, s{sT1}, v{vT+6}")
    img_pos(vT+7, vT+6, vT+8)
    I(f"v_add_u32 v{vT+7}, {HI}, v{vT+7}")
    I(f"ds_write_b32 v{vT+7}, v{vH}")
    I("s_mov_b64 exec, -1")
    vWB = vT + 9
    I(f"v_lshrrev_b32 v{vT+6}, 2, v{vLANE}")
    I(f"v_and_b32 v{vT+7}, 6, v{vT+6}")
    I(f"v_bfe_u32 v{vT+8}, v{vLANE}, 1, 1")
    I(f"s_lshl_b32 s{sT1}, s{sWAVE}, 1")
    I(f"v_or_b32 v{vT+8}, s{sT1}, v{vT+8}")
    I(f"v_xor_b32 v{vT+7}, v{vT+7}, v{vT+8}")
    I(f"v_lshlrev_b32 v{vT+7}, 4, v{vT+7}")
    I(f"v_lshl_or_b32 v{vT+7}, v{vT+6}, 7, v{vT+7}")
    I(f"v_and_b32 v{vT+8}, 1, v{vLANE}")
    I(f"v_lshl_or_b32 v{vWB}, v{vT+8}, 3, v{vT+7}")
    I(f"v_add_u32 v{vWB+1}, {W2I}, v{vWB}")
    I(f"v_lshlrev_b32 v{vWB+2}, 4, v{vG_}")
    I(f"v_add_u32 v{vWB+2}, {OI}, v{vWB+2}")
    G.vm_wait(wlast)
    I("s_waitcnt lgkmcnt(0)")
    I("s_barrier")
    vYB, vYA = vT + 12, vT + 4
    vHA = vRD
    for s in range(7):
        I(f"ds_read_b64_tr_b16 a[{aW2+4*s}:{aW2+4*s+1}], v{vWB+1} offset:{s*4096}")
        I(f"ds_read_b64_tr_b16 a[{aW2+4*s+2}:{aW2+4*s+3}], v{vWB+1} offset:{s*4096+2048}")
    I("s_waitcnt lgkmcnt(0)")
    for s in range(7):
        I(f"ds_read_b128 v[{vRD+4*(s%4)}:{vRD+4*(s%4)+3}], v{vWB+2} offset:{HI - OI + s*64}")
        if s % 4 == 3 or s == 6:
            I("s_waitcnt lgkmcnt(0)")
            for s2 in range(s - (s % 4), s + 1):
                c = "0" if s2 == 0 else f"v[{vYB}:{vYB+3}]"
                I(f"v_mfma_f32_16x16x32_bf16 v[{vYB}:{vYB+3}], v[{vRD+4*(s2%4)}:{vRD+4*(s2%4)+3}], a[{aW2+4*s2}:{aW2+4*s2+3}], {c}")
    for half in range(4):
        for s in range(4*half, 4*half + 4):
            I(f"ds_read_b64_tr_b16 a[{aWO+4*s}:{aWO+4*s+1}], v{vWB} offset:{s*4096}")
            I(f"ds_read_b64_tr_b16 a[{aWO+4*s+2}:{aWO+4*s+3}], v{vWB} offset:{s*4096+2048}")
        I("s_waitcnt lgkmcnt(0)")
    stamp()
    pv(2, 0); pv(2, 1); pv(3, 0); pv(3, 1)
    stamp()
    I(f"v_and_b32 v{vT+6}, 15, v{vLANE}")
    I(f"v_lshlrev_b32 v{vT+6}, 3, v{vT+6}")
    I(f"s_lshl_b32 s{sT1}, s{sWAVE}, 11")
    I(f"s_add_u32 s{sT1}, s{sT1}, {RED}")
    I(f"v_add_u32 v{vT+6}, s{sT1}, v{vT+6}")
    I("s_mov_b64 exec, 0xffff")
    for i in range(16):
        I(f"ds_write_b64 v{vT+6}, a[{aACC+4*i}:{aACC+4*i+1}] offset:{i*128}")
    I("s_mov_b64 exec, -1")
    I(f"v_lshlrev_b32 v{vT+7}, 3, v0")
    I(f"v_add_u32 v{vT+8}, {RED}, v{vT+7}")
    I(f"s_lshl_b32 s{sT0}, s{sGRP}, 3")
    I(f"s_add_u32 s{sT0}, s{sT0}, s{sS}")
    I(f"s_lshl_b32 s{sT1}, s{sT0}, 11")
    I(f"s_add_u32 s{sT1}, s{sT1}, {ODOFF}")
    I(f"v_add_u32 v{vA0}, s{sT1}, v{vT+7}")
    I("s_waitcnt lgkmcnt(0)")
    I("s_barrier")
    vR = vRING
    for w in range(4):
        I(f"ds_read_b64 v[{vR+2*w}:{vR+2*w+1}], v{vT+8} offset:{w*2048}")
    I(f"ds_read_b128 v[{vR+8}:{vR+11}], v{vT+2} offset:{M_LS - MISC}")
    I("s_waitcnt lgkmcnt(1)")
    for h in range(2):
        I(f"v_add_f32 v{vR+h}, v{vR+h}, v{vR+2+h}")
        I(f"v_add_f32 v{vR+4+h}, v{vR+4+h}, v{vR+6+h}")
        I(f"v_add_f32 v{vR+h}, v{vR+h}, v{vR+4+h}")
    I(f"v_cvt_pk_bf16_f32 v{vR+12}, v{vR}, v{vR+1}")
    I(f"v_mov_b32 v{vR+13}, s{sTAG}")
    vm(f"global_store_dwordx2 v{vA0}, v[{vR+12}:{vR+13}], s[{sWS}:{sWS+1}] sc1")
    I("s_waitcnt lgkmcnt(0)")
    I(f"v_add_f32 v{vR+8}, v{vR+8}, v{vR+9}")
    I(f"v_add_f32 v{vR+10}, v{vR+10}, v{vR+11}")
    I(f"v_add_f32 v{vR+8}, v{vR+8}, v{vR+10}")
    I(f"v_and_b32 v{vR+9}, 2, v{vLANE}")
    I(f"v_cmp_eq_u32 vcc, 0, v{vR+9}")
    I(f"v_cndmask_b32 v{vR+14}, v{vR+8}, v{vM}, vcc")
    I(f"v_mov_b32 v{vR+15}, s{sTAG}")
    I(f"s_lshl_b32 s{sT1}, s{sT0}, 5")
    I(f"s_add_u32 s{sT1}, s{sT1}, {OSOFF}")
    I(f"v_lshlrev_b32 v{vR+9}, 3, v{vLANE}")
    I(f"v_add_u32 v{vR+9}, s{sT1}, v{vR+9}")
    I(f"s_cmp_eq_u32 s{sWAVE}, 0")
    I("s_cbranch_scc0 L_nostat")
    I("s_mov_b64 exec, 0xf")
    I(f"global_store_dwordx2 v{vR+9}, v[{vR+14}:{vR+15}], s[{sWS}:{sWS+1}] sc1")
    I("s_mov_b64 exec, -1")
    G.L("L_nostat")
    stamp()
    I(f"s_cmp_eq_u32 s{sC}, 7")
    I("s_cbranch_scc1 L_fin")
    vO = vRING + 16
    vSt = vRING + 32
    I(f"s_lshl_b32 s{sT1}, s{sGRP}, 14")
    I(f"s_add_u32 s{sT1}, s{sT1}, {ODOFF}")
    I(f"v_add_u32 v{vA0}, s{sT1}, v{vT+7}")
    I(f"v_add_u32 v{vT+8}, 0x2000, v{vA0}")
    I(f"s_lshl_b32 s{sT1}, s{sGRP}, 8")
    I(f"s_add_u32 s{sT1}, s{sT1}, {OSOFF}")
    I(f"v_and_b32 v{vT+6}, 31, v{vLANE}")
    I(f"v_lshlrev_b32 v{vT+6}, 3, v{vT+6}")
    I(f"v_add_u32 v{vT+6}, s{sT1}, v{vT+6}")
    def o_loads():
        I(f"global_load_dwordx2 v[{vSt}:{vSt+1}], v{vT+6}, s[{sWS}:{sWS+1}] sc1")
        for k in range(8):
            a = vA0 if k < 4 else vT+8
            I(f"global_load_dwordx2 v[{vO+2*k}:{vO+2*k+1}], v{a}, s[{sWS}:{sWS+1}] offset:{(k & 3)*2048 - 4096} sc1")
    I(f"v_add_u32 v{vA0}, 0x1000, v{vA0}")
    I(f"v_add_u32 v{vT+8}, 0x1000, v{vT+8}")
    o_loads()
    I("s_waitcnt vmcnt(0)")
    poll("o", o_loads, lambda: tagcheck([vSt+1] + [vO+2*k+1 for k in range(8)]))
    vW0 = vSt + 2
    I(f"v_mov_b32_dpp v{vW0}, v{vSt} row_shr:2 row_mask:0xf bank_mask:0xf")
    I(f"v_mov_b32 v{vW0+1}, v{vW0}")
    for ror in (4, 8):
        I(f"v_max_f32_dpp v{vW0+1}, v{vW0+1}, v{vW0+1} row_ror:{ror} row_mask:0xf bank_mask:0xf")
    I(f"v_mov_b32 v{vW0+2}, v{vW0+1}")
    I(f"v_permlane16_swap_b32 v{vW0+1}, v{vW0+2}")
    I(f"v_max_f32 v{vW0+1}, v{vW0+1}, v{vW0+2}")
    I(f"v_sub_f32 v{vW0}, v{vW0}, v{vW0+1}")
    I(f"v_exp_f32 v{vW0}, v{vW0}")
    I(f"v_mul_f32 v{vW0+1}, v{vW0}, v{vSt}")
    for ror in (4, 8):
        I(f"v_add_f32_dpp v{vW0+1}, v{vW0+1}, v{vW0+1} row_ror:{ror} row_mask:0xf bank_mask:0xf")
    I(f"v_mov_b32 v{vW0+2}, v{vW0+1}")
    I(f"v_permlane16_swap_b32 v{vW0+1}, v{vW0+2}")
    I(f"v_add_f32 v{vW0+1}, v{vW0+1}, v{vW0+2}")
    I(f"v_rcp_f32 v{vW0+1}, v{vW0+1}")
    I(f"v_mul_f32 v{vW0}, v{vW0}, v{vW0+1}")
    for k in range(8):
        for h in range(2):
            I(f"v_readlane_b32 s{sWT+2*k+h}, v{vW0}, {4*k+2+h}")
    vo0, vo1 = vW0+3, vW0+4
    for k in range(8):
        I(f"v_lshlrev_b32 v{vW0+5}, 16, v{vO+2*k}")
        I(f"v_and_b32 v{vW0+6}, 0xffff0000, v{vO+2*k}")
        if k == 0:
            I(f"v_mul_f32 v{vo0}, s{sWT}, v{vW0+5}")
            I(f"v_mul_f32 v{vo1}, s{sWT+1}, v{vW0+6}")
        else:
            I(f"v_fmac_f32 v{vo0}, s{sWT+2*k}, v{vW0+5}")
            I(f"v_fmac_f32 v{vo1}, s{sWT+2*k+1}, v{vW0+6}")
    I(f"v_cvt_pk_bf16_f32 v{vo0}, v{vo0}, v{vo1}")
    I(f"v_lshrrev_b32 v{vW0+5}, 4, v0")
    I(f"v_and_b32 v{vW0+6}, 7, v{vW0+5}")
    I(f"v_lshrrev_b32 v{vW0+5}, 3, v{vW0+5}")
    I(f"v_lshl_add_u32 v{vW0+6}, v{vW0+5}, 7, v{vW0+6}")
    I(f"v_and_b32 v{vW0+5}, 15, v0")
    I(f"v_lshl_add_u32 v{vW0+6}, v{vW0+5}, 3, v{vW0+6}")
    img_pos(vW0+5, vW0+6, vW0+7)
    I(f"v_add_u32 v{vW0+5}, {OI}, v{vW0+5}")
    I(f"ds_write_b16 v{vW0+5}, v{vo0}")
    I(f"ds_write_b16_d16_hi v{vW0+5}, v{vo0} offset:512")
    I("s_waitcnt lgkmcnt(0)")
    I("s_barrier")
    vOA = vRING + 64
    for s in range(16):
        I(f"ds_read_b128 v[{vOA+4*s}:{vOA+4*s+3}], v{vWB+2} offset:{s*64}")
        if s == 11: I("s_waitcnt lgkmcnt(4)")
    for s in range(16):
        if s == 0: I("s_waitcnt lgkmcnt(8)")
        if s == 8: I("s_waitcnt lgkmcnt(0)")
        c = "0" if s == 0 else f"v[{vYA}:{vYA+3}]"
        I(f"v_mfma_f32_16x16x32_bf16 v[{vYA}:{vYA+3}], v[{vOA+4*s}:{vOA+4*s+3}], a[{aWO+4*s}:{aWO+4*s+3}], {c}")
    I(f"v_sub_f32 v{vW0}, v{vYA}, v{vYB}")
    I(f"v_fma_f32 v{vW0}, v{vW0}, s{sG}, v{vYB}")
    I(f"v_mov_b32 v{vW0+1}, s{sTAG}")
    I(f"s_lshl_b32 s{sT0}, s{sB}, 3")
    I(f"s_add_u32 s{sT0}, s{sT0}, s{sC}")
    I(f"s_lshl_b32 s{sT0}, s{sT0}, 12")
    I(f"s_lshl_b32 s{sT1}, s{sWAVE}, 7")
    I(f"s_add_u32 s{sT0}, s{sT0}, s{sT1}")
    I(f"s_add_u32 s{sT0}, s{sT0}, {YOFF}")
    I(f"s_lshl_b32 s{sT1}, s{sHKV}, 9")
    I(f"s_add_u32 s{sT1}, s{sT1}, s{sT0}")
    I(f"v_and_b32 v{vW0+2}, 15, v{vLANE}")
    I(f"v_lshlrev_b32 v{vW0+2}, 3, v{vW0+2}")
    I(f"v_add_u32 v{vW0+3}, s{sT1}, v{vW0+2}")
    I("s_mov_b64 exec, 0xffff")
    I(f"global_store_dwordx2 v{vW0+3}, v[{vW0}:{vW0+1}], s[{sWS}:{sWS+1}] sc1")
    I("s_mov_b64 exec, -1")
    I(f"s_sub_u32 s{sT1}, 7, s{sB}")
    I(f"s_cmp_eq_u32 s{sS}, s{sT1}")
    I("s_cbranch_scc0 L_fin")
    I(f"v_lshrrev_b32 v{vW0+3}, 4, v{vLANE}")
    I(f"v_lshl_add_u32 v{vW0+3}, v{vW0+3}, 9, v{vW0+2}")
    I(f"v_add_u32 v{vW0+3}, s{sT0}, v{vW0+3}")
    vY = vO
    def y_loads():
        I(f"global_load_dwordx2 v[{vY}:{vY+1}], v{vW0+3}, s[{sWS}:{sWS+1}] sc1")
        I(f"global_load_dwordx2 v[{vY+2}:{vY+3}], v{vW0+3}, s[{sWS}:{sWS+1}] offset:2048 sc1")
    y_loads()
    I("s_waitcnt vmcnt(0)")
    poll("y", y_loads, lambda: tagcheck([vY+1, vY+3]))
    I(f"v_add_f32 v{vY}, v{vY}, v{vY+2}")
    xsum(vY, vY+1)
    I(f"v_cvt_pk_bf16_f32 v{vY}, v{vY}, v{vY}")
    I(f"s_mul_i32 s{sT0}, s{sB}, 896")
    I(f"s_lshl_b32 s{sT1}, s{sC}, 7")
    I(f"s_add_u32 s{sT0}, s{sT0}, s{sT1}")
    I(f"s_lshl_b32 s{sT1}, s{sWAVE}, 5")
    I(f"s_add_u32 s{sT0}, s{sT0}, s{sT1}")
    I(f"v_lshrrev_b32 v{vY+2}, 2, v{vW0+2}")
    I("s_mov_b64 exec, 0xffff")
    I(f"buffer_store_short v{vY}, v{vY+2}, s[{rOUT}:{rOUT+3}], s{sT0} offen")
    I("s_mov_b64 exec, -1")
    I("s_cmp_eq_u32 s2, 15")
    I("s_cbranch_scc0 L_fin")
    I(f"s_cmp_eq_u32 s{sWAVE}, 0")
    I("s_cbranch_scc0 L_fin")
    I(f"v_mov_b32 v{vY}, s{sTAG}")
    I(f"v_mov_b32 v{vY+1}, {EPOCH}")
    I("s_mov_b64 exec, 1")
    I(f"global_store_dword v{vY+1}, v{vY}, s[{sWS}:{sWS+1}] sc1")
    I("s_mov_b64 exec, -1")
    G.L("L_fin")
    if stamps:
        stamp()
        I(f"s_cmp_eq_u32 s{sWAVE}, 0")
        I("s_cbranch_scc0 L_end")
        if stamps == "dbg":
            I(f"v_mov_b32 v{vT}, 0")
            I("s_mov_b64 exec, 1")
            for k in range(8):
                I(f"v_mov_b32 v{vT+2}, s{sSTAMP+2*k}")
                I(f"global_atomic_umax v{vT}, v{vT+2}, s[{sDBG}:{sDBG+1}] offset:{4*k}")
            I(f"s_not_b32 s{sT0}, s{sSTAMP}")
            I(f"v_mov_b32 v{vT+2}, s{sT0}")
            I(f"global_atomic_umax v{vT}, v{vT+2}, s[{sDBG}:{sDBG+1}] offset:32")
            for k in range(1, 8):
                I(f"s_not_b32 s{sT0}, s{sSTAMP+2*k}")
                I(f"v_mov_b32 v{vT+2}, s{sT0}")
                I(f"global_atomic_umax v{vT}, v{vT+2}, s[{sDBG}:{sDBG+1}] offset:{32+4*k}")
            I("s_endpgm")
        I(f"s_mul_i32 s{sT0}, s2, 64")
        I(f"s_add_u32 s{sT0}, s{sT0}, {STAMP_OFF}")
        I(f"v_mov_b32 v{vT}, s{sT0}")
        I("s_mov_b64 exec, 1")
        for k in range(8):
            I(f"v_mov_b32 v{vT+2}, s{sSTAMP+2*k}")
            I(f"v_mov_b32 v{vT+3}, s{sSTAMP+2*k+1}")
            I(f"global_store_dwordx2 v{vT}, v[{vT+2}:{vT+3}], s[{sWS}:{sWS+1}] offset:{8*k}")
    if stamps == "dbg":
        pass
    G.L("L_end")
    I("s_endpgm")
    G.L("L_code_end")
    return G

HEADER = open("gated_mix__gqa_block_cached__dense_activation_relu__decode.s.ref").read().split("; Override launch")[0]

def emit(path, **kw):
    G = gen(**kw)
    body, nn = G.text()
    src = HEADER + f"""; Override launch geometry by editing the next line (default: block=256,
; grid=ceil(out_elems/256), lds=0). Harness parses it; keep it on one line.
; @launch grid=(256,1,1) block=(256,1,1) lds={LDS_BYTES}
.amdgcn_target "amdgcn-amd-amdhsa--gfx950"
.text
.globl {NAME}
.p2align 8
.type {NAME},@function
{NAME}:
{body}
.section .rodata,"a"
.p2align 6
.amdhsa_kernel {NAME}
  .amdhsa_next_free_vgpr 512
  .amdhsa_next_free_sgpr 102
  .amdhsa_accum_offset 256
  .amdhsa_group_segment_fixed_size 0
  .amdhsa_kernarg_size 96
  .amdhsa_user_sgpr_count 2
  .amdhsa_user_sgpr_kernarg_segment_ptr 1
  .amdhsa_system_sgpr_workgroup_id_x 1
.end_amdhsa_kernel
"""
    open(path, "w").write(src)
    return nn

if __name__ == "__main__":
    out = sys.argv[1] if len(sys.argv) > 1 else "k.s"
    kw = eval("dict(" + (sys.argv[2] if len(sys.argv) > 2 else "") + ")")
    print("nops inserted:", emit(out, **kw))
```

```python
import re

REG_RE = re.compile(r'(?<![\w.])([vas])\[(\d+):(\d+)\]|(?<![\w.])([vas])(\d+)(?![\w\[])|(?<![\w.])(vcc|exec|m0)(?![\w])')

def regs_of(tok):
    out = set()
    for m in REG_RE.finditer(tok):
        if m.group(1):
            out |= {(m.group(1), i) for i in range(int(m.group(2)), int(m.group(3)) + 1)}
        elif m.group(4):
            out.add((m.group(4), int(m.group(5))))
        else:
            out.add((m.group(6), 0))
    return out

NO_DST_S = ("s_cmp", "s_cbranch", "s_waitcnt", "s_barrier", "s_nop", "s_branch", "s_endpgm", "s_setprio", "s_sleep", "s_bitcmp")
TRANS = ("v_exp_f32", "v_log_f32", "v_rcp_f32", "v_rsq_f32", "v_sqrt_f32", "v_sin_f32", "v_cos_f32")

class Ins:
    def __init__(self, text):
        self.text = text
        body = text.split(";")[0].strip()
        self.label = body.endswith(":")
        self.op = body.split()[0] if body else ""
        rest = body[len(self.op):].strip()
        self.ops = [o.strip() for o in rest.split(",")] if rest else []
        op = self.op
        self.is_mfma = op.startswith("v_mfma")
        self.is_valu = op.startswith("v_") and not self.is_mfma
        self.is_trans = any(op.startswith(t) for t in TRANS)
        self.is_ds = op.startswith("ds_")
        self.is_vmem = op.startswith("buffer_") or op.startswith("global_")
        self.is_salu = op.startswith("s_")
        self.is_dpp = ("row_" in body and "row_mask" in body) or "quad_perm" in body
        self.is_lds_dma = self.is_vmem and re.search(r'\blds\b', body) is not None
        self.is_branch = op.startswith("s_cbranch") or op == "s_branch"
        self.target = self.ops[0] if self.is_branch else None
        w, r = set(), set()
        allops = [regs_of(o) for o in self.ops]
        if self.label or not op:
            pass
        elif self.is_mfma:
            w = allops[0]; r = allops[1] | allops[2] | allops[3]
            self.srcc = allops[3]; self.srcab = allops[1] | allops[2]
        elif op.startswith("v_permlane") and "swap" in op:
            w = allops[0] | allops[1]; r = set(w)
        elif op.startswith("v_cmp"):
            w = allops[0]; r = set().union(*allops[1:])
        elif self.is_valu:
            w = allops[0]; r = set().union(*allops[1:]) if len(allops) > 1 else set()
            if op.startswith("v_fmac") or op.startswith("v_writelane") or self.is_dpp:
                r |= w
            if op.startswith("v_cndmask") and len(self.ops) == 3:
                r.add(("vcc", 0))
        elif self.is_ds:
            if op.startswith("ds_read"):
                w = allops[0]; r = set().union(*allops[1:])
            else:
                r = set().union(*allops)
        elif self.is_vmem:
            if "load" in op and not self.is_lds_dma:
                w = allops[0]; r = set().union(*allops[1:])
            else:
                r = set().union(*allops)
            if self.is_lds_dma:
                r.add(("m0", 0))
        elif self.is_salu:
            if any(op.startswith(p) for p in NO_DST_S):
                r = set().union(*allops) if allops else set()
            else:
                w = allops[0]; r = set().union(*allops[1:]) if len(allops) > 1 else set()
            if op in ("s_cbranch_vccz", "s_cbranch_vccnz"):
                r.add(("vcc", 0))
        self.w, self.r = w, r
        self.states = 1
        if op == "s_nop":
            self.states = int(self.ops[0], 0) + 1
        self.wide_store = self.is_vmem and "store" in op and ("x4" in op or "x3" in op)

def need(prod, cons):
    n = 0
    pw = prod.w
    if prod.is_valu:
        vw = {x for x in pw if x[0] in "va"}
        sw = {x for x in pw if x[0] == "s" or x[0] == "vcc"}
        if cons.is_mfma and vw & cons.r: n = max(n, 2)
        if cons.is_valu and vw & cons.r:
            if cons.op.startswith("v_readlane") or cons.op.startswith("v_readfirstlane"): n = max(n, 1)
            if cons.op.startswith("v_permlane"): n = max(n, 2)
            if cons.is_dpp: n = max(n, 2)
            if prod.is_trans: n = max(n, 1)
        if cons.is_mfma and prod.is_trans and vw & cons.r: n = max(n, 2)
        if sw:
            if cons.is_valu and sw & cons.r:
                n = max(n, 4 if (cons.op.startswith("v_readlane") or cons.op.startswith("v_writelane")) else 2)
            if cons.is_vmem and sw & cons.r: n = max(n, 5)
            if cons.is_mfma and sw & cons.r: n = max(n, 2)
    if prod.is_mfma:
        d = pw
        if cons.is_mfma:
            if d & cons.srcab: n = max(n, 8)
            if d & cons.srcc and cons.srcc != d: n = max(n, 6)
            if d & cons.w and cons.w != d: n = max(n, 6)
        elif cons.is_valu or cons.is_ds or cons.is_vmem:
            if d & (cons.r | cons.w): n = max(n, 8)
        if cons.is_valu and prod.srcc & cons.w: n = max(n, 3)
    if prod.is_salu and ("m0", 0) in pw and cons.is_lds_dma: n = max(n, 1)
    if prod.wide_store and (cons.is_valu or cons.is_ds or cons.is_vmem or cons.is_mfma):
        data = regs_of(prod.ops[1]) if prod.op.startswith("global_") else regs_of(prod.ops[0])
        if data & cons.w: n = max(n, 2 if cons.is_valu else 1)
    return n

def pad(lines, horizon=12):
    ins = [Ins(t) for t in lines]
    out = []
    hist = []
    pending = {}
    seen = set()
    nins = 0
    for it in ins:
        if it.label:
            name = it.text.strip()[:-1]
            seen.add(name)
            merged = {id(h[0]): h for h in hist}
            for snap in pending.pop(name, []):
                for h in snap:
                    if id(h[0]) not in merged or merged[id(h[0])][1] > h[1]:
                        merged[id(h[0])] = h
            hist = list(merged.values())
            out.append(it.text)
            continue
        if not it.op:
            out.append(it.text); continue
        req = 0
        for p, age in hist:
            req = max(req, need(p, it) - age)
        while req > 0:
            k = min(req, 16)
            out.append(f"    s_nop {k-1}")
            nins += 1
            hist = [(p, a + k) for p, a in hist]
            req -= k
        out.append(it.text)
        hist = [(p, a + it.states) for p, a in hist if a + it.states < horizon]
        hist.append((it, 0))
        if it.is_branch:
            if it.target in seen:
                pass
            else:
                pending.setdefault(it.target, []).append(list(hist))
            if it.op == "s_branch":
                hist = []
        if it.op == "s_endpgm":
            hist = []
    return out, nins

class Gen:
    def __init__(self):
        self.lines = []
        self.vm_n = 0
        self.vm_bound = 0
    def I(self, s):
        for x in s.strip().split("\n"):
            x = x.strip()
            if x: self.lines.append(x if x.endswith(":") else "    " + x)
    def L(self, name):
        self.lines.append(name + ":")
    def C(self, s):
        self.lines.append("    ; " + s)
    def vm(self, s):
        self.I(s)
        self.vm_n += 1
        self.vm_bound += 1
        return self.vm_n - 1
    def vm_wait(self, idx):
        n = min(self.vm_n - idx - 1, 63)
        if n < self.vm_bound:
            self.I(f"s_waitcnt vmcnt({n})")
            self.vm_bound = n
    def vm_drain(self):
        self.I("s_waitcnt vmcnt(0)")
        self.vm_bound = 0
    def window(self, W):
        if self.vm_bound > W - 1:
            self.I(f"s_waitcnt vmcnt({W-1})")
            self.vm_bound = W - 1
    def text(self):
        out, n = pad(self.lines)
        return "\n".join(out), n

def check_async(lines):
    ins = [Ins(t) for t in lines]
    BIG = 10**6
    vm, lg = {}, {}
    pending = {}
    seen = set()
    problems = []
    def merge(a, b):
        out = dict(a)
        for k, v in b.items():
            if k not in out or out[k][1] > v[1]: out[k] = v
        return out
    for n, it in enumerate(ins):
        if it.label:
            name = it.text.strip()[:-1]; seen.add(name)
            for svm, slg in pending.pop(name, []):
                vm = merge(vm, svm); lg = merge(lg, slg)
            continue
        if not it.op: continue
        if it.op == "s_waitcnt":
            m = re.search(r'vmcnt\((\d+)\)', it.text)
            if m: vm = {k: v for k, v in vm.items() if v[1] < int(m.group(1))}
            m = re.search(r'lgkmcnt\((\d+)\)', it.text)
            if m:
                c = int(m.group(1))
                lg = {k: v for k, v in lg.items() if (v[1] < c if v[1] >= 0 else c > 0)}
            continue
        touched = it.r | it.w
        if "async-ok" in it.text: touched = set()
        for q, nm in ((vm, "vm"), (lg, "lgkm")):
            for k, v in q.items():
                hit = v[0] & touched
                if hit and not (it.is_vmem and nm == "vm" and not (v[0] & it.r)):
                    problems.append(f"line {n}: '{it.text.strip()}' touches {sorted(hit)[:4]} pending from '{v[2].strip()}'")
        if it.is_vmem:
            vm = {k: (v[0], v[1] + 1, v[2]) for k, v in vm.items()}
            vm[n] = (set(it.w), 0, it.text)
        elif it.is_ds:
            lg = {k: (v[0], v[1] + 1 if v[1] >= 0 else v[1], v[2]) for k, v in lg.items()}
            lg[n] = (set(it.w), 0, it.text)
        elif it.op.startswith("s_load") or it.op.startswith("s_memrealtime"):
            lg[n] = (set(it.w), -1, it.text)
        if it.is_branch:
            if it.target not in seen:
                pending.setdefault(it.target, []).append((dict(vm), dict(lg)))
            if it.op == "s_branch": vm, lg = {}, {}
        if it.op == "s_endpgm": vm, lg = {}, {}
    return problems
```

```python
import sys, struct, math
from asmlib import Gen, check_async

NAME = "gated_mix__gqa_block_cached__dense_activation_relu__decode_kernel"

QOFF, HOFF, ODOFF, OSOFF, YOFF, EPOCH = 0x0, 0x10000, 0x40000, 0xC0000, 0xD0000, 0xF8000
STAMP_OFF = 200 << 20
W2I = 131072
XI, RT = W2I, W2I + 4096
QI, OI, HI, MISC = 159744, 160768, 161792, 162304
M_G, M_MX, M_LS = MISC + 4, MISC + 16, MISC + 64
LDS_BYTES = 163840
sX, sK, sV, sWQ, sWO, sBX, sW1, sW2, sGW, sOUT, sDBG, sWS = 4, 6, 8, 10, 12, 14, 16, 18, 20, 22, 24, 26
rK, rV, rW, rX, rWO, rW2, rOUT, rG = 28, 32, 36, 40, 44, 48, 56, 60
sOUTB, sBSTR, sLO, sTASK = 52, 53, 54, 55
sWAVE = 3
sGRP, sS, sB, sHKV, sC, sT0, sLDSW, sKV, sTAG, sG, sSELLO, sSELHI, sSC = 64, 65, 66, 67, 68, 69, 70, 71, 72, 73, 74, 75, 76
sSTR, sSTG, sVB = 77, 78, 79
sSTAMP = 80
sP0, sP1, sT1, sT2 = 96, 98, 100, 101
sWT = 4
sF = 36
sOUTS = 52
vLANE = 1
vKD = 2
vKA = 10
vVO = 14
vA0 = 15
vT = 16
vGX = 232
vG_, vN_ = 20, 21
vS = 32
vTA = 32
vRD = 48
vPT = 64
vRING = 80
vP = 240
aACC, aQ, aKT, aV = 0, 64, 96, 160
aWO, aW2 = 64, 128
tRW, tRR, tOD, tG1, tG2, tGS, tOI, tYS, tYG, tOUT, tRR2 = range(vTA, vTA + 11)
tPO, tPY = vTA + 12, vTA + 14

def f32(x):
    return "0x%08x" % struct.unpack("<I", struct.pack("<f", x))[0]

def gen(W=16, stamps=False, vpre=8, code_pf=True, spin=100000, wf='nt', rbar=True, kfirst=2, cover=12,
        spin_to=0, pretouch=True, vmid=16, vrole=8, winfirst=False, fill1=8, fill2=8, vpost=(1,1,2,2,0), b0=False, nobar=False, nopv=False, nosm=False, noqk=False, skip_w=False, nopoll=(), norole=False, W3=None, swave=0, spts=(1,2,3,4,5,6,7), W2=None, wswitch='q'):
    G = Gen()
    Wc = [W]
    I, vm = G.I, G.vm
    nst = [0]
    def stamp(pt=None):
        if stamps and (pt is None or pt in spts):
            k = nst[0]; nst[0] += 1
            assert k < 8
            I(f"s_memrealtime s[{sSTAMP+2*k}:{sSTAMP+2*k+1}]")
            I("s_waitcnt lgkmcnt(0)")
    def stampx(pt):
        if stamps and pt in spts:
            k = nst[0]; nst[0] += 1
            I(f"s_memrealtime s[{sSTAMP+2*k}:{sSTAMP+2*k+1}]")
    def srd(r, p, size):
        I(f"s_mov_b32 s{r}, s{p}")
        I(f"s_and_b32 s{r+1}, s{p+1}, 0xffff")
        I(f"s_mov_b32 s{r+2}, {size}")
        I(f"s_mov_b32 s{r+3}, 0x20000")
    def xsum(v, t, op="v_add_f32"):
        I(f"v_mov_b32 v{t}, v{v}")
        I(f"v_permlane16_swap_b32 v{v}, v{t}")
        I(f"{op} v{v}, v{v}, v{t}")
        I(f"v_mov_b32 v{t}, v{v}")
        I(f"v_permlane32_swap_b32 v{v}, v{t}")
        I(f"{op} v{v}, v{v}, v{t}")
    def poll(name, reload, check):
        if name in nopoll: return
        I(f"s_mov_b32 s{sT2}, 0")
        G.L(f"L_{name}_chk")
        check()
        I(f"s_cbranch_vccz L_{name}_ok")
        I(f"s_add_u32 s{sT2}, s{sT2}, 1")
        I(f"s_cmp_gt_u32 s{sT2}, {spin}")
        I(f"s_cbranch_scc1 L_{name}_ok")
        reload()
        I("s_waitcnt vmcnt(0)")
        I(f"s_branch L_{name}_chk")
        G.L(f"L_{name}_ok")
    def tagcheck(regs):
        I(f"v_cmp_ne_u32 vcc, s{sTAG}, v{regs[0]}")
        for r in regs[1:]:
            I(f"v_cmp_ne_u32 s[{sP0}:{sP0+1}], s{sTAG}, v{r}")
            I(f"s_or_b64 vcc, vcc, s[{sP0}:{sP0+1}]")
    def img_pos(dst, row, t):
        I(f"v_lshrrev_b32 v{dst}, 5, v{row}")
        I(f"v_lshlrev_b32 v{dst}, 6, v{dst}")
        I(f"v_bfe_u32 v{t}, v{row}, 2, 2")
        I(f"v_lshl_add_u32 v{dst}, v{t}, 4, v{dst}")
        I(f"v_bfe_u32 v{t}, v{row}, 4, 1")
        I(f"v_lshl_add_u32 v{dst}, v{t}, 3, v{dst}")
        I(f"v_and_b32 v{t}, 3, v{row}")
        I(f"v_lshl_add_u32 v{dst}, v{t}, 1, v{dst}")

    if stamps or spin_to:
        I(f"s_memrealtime s[{sSTAMP}:{sSTAMP+1}]"); nst[0] = 1
        for k in range(1, 8): I(f"s_mov_b64 s[{sSTAMP+2*k}:{sSTAMP+2*k+1}], 0")
    I("s_cmp_ge_u32 s2, 256")
    I("s_cbranch_scc1 L_end")
    I("s_load_dwordx16 s[4:19], s[0:1], 0")
    I("s_load_dwordx8 s[20:27], s[0:1], 64")
    I(f"v_lshrrev_b32 v{vT}, 6, v0")
    I(f"v_and_b32 v{vLANE}, 63, v0")
    I(f"v_readfirstlane_b32 s{sWAVE}, v{vT}")
    if code_pf:
        I(f"s_cmp_eq_u32 s{sWAVE}, 3")
        I("s_cbranch_scc0 L_nopf")
        I(f"s_getpc_b64 s[{sP0}:{sP0+1}]")
        G.L("L_pc")
        I(f"s_sub_u32 s{sP0}, s{sP0}, L_pc-{NAME}")
        I(f"s_subb_u32 s{sP0+1}, s{sP0+1}, 0")
        I(f"v_lshlrev_b32 v{vT+1}, 7, v{vLANE}")
        for k in range(3):
            I(f"v_min_u32 v{vT+2}, L_code_end-{NAME}-4, v{vT+1}")
            I(f"global_load_dword v{vP+15}, v{vT+2}, s[{sP0}:{sP0+1}]")
            if k < 2: I(f"v_add_u32 v{vT+1}, 0x2000, v{vT+1}")
        G.L("L_nopf")
    I(f"s_lshr_b32 s{sGRP}, s2, 3")
    I(f"s_and_b32 s{sS}, s2, 7")
    I(f"s_lshr_b32 s{sB}, s{sGRP}, 3")
    I(f"s_and_b32 s{sHKV}, s{sGRP}, 7")
    I(f"s_add_u32 s{sC}, s{sS}, s{sHKV}")
    I(f"s_and_b32 s{sC}, s{sC}, 7")
    I(f"s_lshl_b32 s{sLDSW}, s{sWAVE}, 15")
    I(f"s_lshl_b32 s{sKV}, s{sGRP}, 21")
    I(f"s_lshl_b32 s{sT0}, s{sC}, 18")
    I(f"s_add_u32 s{sKV}, s{sKV}, s{sT0}")
    I(f"s_lshl_b32 s{sT0}, s{sWAVE}, 13")
    I(f"s_add_u32 s{sKV}, s{sKV}, s{sT0}")
    I(f"v_lshrrev_b32 v{vT}, 5, v{vLANE}")
    I(f"v_and_b32 v{vT+1}, 31, v{vLANE}")
    I(f"v_lshlrev_b32 v{vT+2}, 2, v{vT}")
    I(f"v_xor_b32 v{vT+1}, v{vT+1}, v{vT+2}")
    I(f"v_lshlrev_b32 v{vT+1}, 4, v{vT+1}")
    I(f"v_lshl_or_b32 v{vKD}, v{vT}, 9, v{vT+1}")
    for i in range(1, 8):
        I(f"v_xor_b32 v{vKD+i}, {(8*(i&1) + (i>>1)) << 4}, v{vKD}")
    I(f"v_lshrrev_b32 v{vG_}, 4, v{vLANE}")
    I(f"v_and_b32 v{vN_}, 15, v{vLANE}")
    I("s_waitcnt lgkmcnt(0)")
    stamp(20)
    I(f"s_load_dword s{sTAG}, s[{sWS}:{sWS+1}], {EPOCH}")
    srd(rK, sK, 0x4000000)
    I(f"s_mov_b32 s{sTASK}, 0")
    if norole: I("s_branch L_roleDone")
    I(f"s_cmp_eq_u32 s{sWAVE}, 2")
    I("s_cbranch_scc0 L_noGateLoads")
    srd(rG, sGW, 896)
    I(f"s_mul_i32 s{sT0}, s{sB}, 896")
    I(f"s_add_u32 s{rX}, s{sX}, s{sT0}")
    I(f"s_addc_u32 s{rX+1}, s{sX+1}, 0")
    I(f"s_and_b32 s{rX+1}, s{rX+1}, 0xffff")
    I(f"s_mov_b32 s{rX+2}, 896")
    I(f"s_mov_b32 s{rX+3}, 0x20000")
    I(f"v_lshlrev_b32 v{vT}, 4, v{vLANE}")
    I(f"buffer_load_dwordx4 v[{vGX}:{vGX+3}], v{vT}, s[{rX}:{rX+3}], 0 offen")
    I(f"buffer_load_dwordx4 v[{vGX+4}:{vGX+7}], v{vT}, s[{rG}:{rG+3}], 0 offen")
    G.L("L_noGateLoads")
    I(f"s_and_b32 s{sT0}, s{sS}, 1")
    I(f"s_cmp_eq_u32 s{sT0}, 0")
    I("s_cbranch_scc0 L_roleDone")
    I(f"s_lshl_b32 s{sT0}, s{sHKV}, 2")
    I(f"s_lshr_b32 s{sT1}, s{sS}, 1")
    I(f"s_add_u32 s{sT0}, s{sT0}, s{sT1}")
    I(f"s_cmp_lt_u32 s{sT0}, 23")
    I("s_cbranch_scc0 L_roleDone")
    I(f"s_mul_i32 s{sT1}, s{sB}, 23")
    I(f"s_add_u32 s{sT0}, s{sT0}, s{sT1}")
    I(f"s_cmp_lt_u32 s{sT0}, 64")
    I("s_cbranch_scc1 L_roleQ")
    I(f"s_sub_u32 s{sT0}, s{sT0}, 64")
    I(f"s_lshl_b32 s{sT1}, s{sT0}, 7")
    I(f"s_add_u32 s{rW}, s{sW1}, s{sT1}")
    I(f"s_addc_u32 s{rW+1}, s{sW1+1}, 0")
    I(f"s_sub_u32 s{rW+2}, {448*3584}, s{sT1}")
    I(f"s_movk_i32 s{sSTR}, 3584")
    I(f"s_lshl_b32 s{sOUTB}, s{sT0}, 8")
    I(f"s_add_u32 s{sOUTB}, s{sOUTB}, {HOFF}")
    I(f"s_movk_i32 s{sBSTR}, 7168")
    I(f"s_mov_b32 s{sLO}, 0")
    I("s_branch L_taskLoads")
    G.L("L_roleQ")
    I(f"s_lshl_b32 s{sT1}, s{sT0}, 7")
    I(f"s_add_u32 s{rW}, s{sWQ}, s{sT1}")
    I(f"s_addc_u32 s{rW+1}, s{sWQ+1}, 0")
    I(f"s_sub_u32 s{rW+2}, {448*8192}, s{sT1}")
    I(f"s_movk_i32 s{sSTR}, 8192")
    I(f"s_lshr_b32 s{sT1}, s{sT0}, 3")
    I(f"s_lshl_b32 s{sOUTB}, s{sT1}, 13")
    I(f"s_and_b32 s{sT1}, s{sT0}, 7")
    I(f"s_lshl_b32 s{sT1}, s{sT1}, 8")
    I(f"s_add_u32 s{sOUTB}, s{sOUTB}, s{sT1}")
    I(f"s_movk_i32 s{sBSTR}, 2048")
    I(f"s_mov_b32 s{sLO}, 0xff800000")
    G.L("L_taskLoads")
    I(f"s_and_b32 s{rW+1}, s{rW+1}, 0xffff")
    I(f"s_mov_b32 s{rW+3}, 0x20000")
    srd(rX, sX, 3584)
    I(f"v_mul_u32_u24 v{vT}, 896, v{vG_}")
    I(f"v_lshl_add_u32 v{vT}, v{vN_}, 4, v{vT}")
    I(f"s_lshl_b32 s{sT0}, s{sWAVE}, 8")
    I(f"s_lshl_b32 s{sT1}, s{sWAVE}, 10")
    I(f"s_add_u32 m0, s{sT1}, {XI}")
    I(f"v_lshrrev_b32 v{vT+1}, 3, v{vLANE}")
    I(f"buffer_load_dwordx4 v{vT}, s[{rX}:{rX+3}], s{sT0} offen {wf} lds")
    I(f"v_and_b32 v{vT+2}, 6, v{vT+1}")
    I(f"v_and_b32 v{vT+3}, 7, v{vLANE}")
    I(f"v_xor_b32 v{vT+2}, v{vT+2}, v{vT+3}")
    I(f"v_mul_lo_u32 v{vT+1}, v{vT+1}, s{sSTR}")
    I(f"v_lshl_add_u32 v{vT+1}, v{vT+2}, 4, v{vT+1}")
    I(f"s_lshl_b32 s{sT1}, s{sSTR}, 3")
    I(f"s_lshl_b32 s{sT0}, s{sWAVE}, 7")
    I(f"s_mul_i32 s{sT0}, s{sT0}, s{sSTR}")
    for i in range(16):
        I(f"s_add_u32 m0, s{sLDSW}, {16384 + i*1024}")
        if i: I(f"s_add_u32 s{sT0}, s{sT0}, s{sT1}")
        I(f"buffer_load_dwordx4 v{vT+1}, s[{rW}:{rW+3}], s{sT0} offen {wf} lds")
    I(f"s_mov_b32 s{sTASK}, 1")
    G.L("L_roleDone")
    if rbar: I("s_barrier")
    stampx(21)
    G.vm_n = 0; G.vm_bound = 20
    kidx = {}
    def slot(t): return t if t < 4 else (t & 1)
    def k_tile(t, win=True):
        I(f"s_add_u32 s{sT0}, s{sKV}, {t*32768}")
        for i in range(8):
            if i % 4 == 0:
                if i == 4: I(f"s_add_u32 s{sT0}, s{sT0}, 4096")
                I(f"s_add_u32 m0, s{sLDSW}, {slot(t)*8192 + (i>>2)*4096}")
            if win: G.window(Wc[0])
            kidx[t] = vm(f"buffer_load_dwordx4 v{vKD+i}, s[{rK}:{rK+3}], s{sT0} offen offset:{(i&3)*1024} nt lds")
    vidx = {}
    def v_reg(j):
        return ("a", aV + 4*j) if j < 24 else ("v", vRING + 4*(j-24))
    vcur = [None]; vnext = [0]; vlimit = [64]
    def v_loads(n, win=True):
        for _ in range(min(n, vlimit[0] - vnext[0])):
            j = vnext[0]; vnext[0] += 1
            beta, h, tp, r = j >> 4, (j >> 3) & 1, (j >> 2) & 1, j & 3
            base = (2*beta + tp)*32768 + (r >> 1)*4096
            if vcur[0] != base:
                I(f"s_add_u32 s{sVB}, s{sKV}, {base}")
                vcur[0] = base
            if win: G.window(Wc[0])
            f, b0 = v_reg(j)
            vidx[j] = vm(f"buffer_load_dwordx4 {f}[{b0}:{b0+3}], v{vVO}, s[{rV}:{rV+3}], s{sVB} offen offset:{(r&1)*2048 + h*256} nt")
    G.vm_bound = 20
    for t in range(kfirst): k_tile(t, win=winfirst)
    srd(rV, sV, 0x4000000)
    I(f"v_lshlrev_b32 v{vVO}, 9, v{vG_}")
    I(f"v_lshl_or_b32 v{vVO}, v{vN_}, 4, v{vVO}")
    v_loads(vrole, win=winfirst)
    stampx(22)
    I(f"v_and_b32 v{vT+6}, 3, v{vN_}")
    I(f"v_lshrrev_b32 v{vT+7}, 2, v{vN_}")
    I(f"v_lshl_or_b32 v{vT+6}, v{vT+6}, 2, v{vT+7}")
    I(f"v_xor_b32 v{vT+7}, v{vG_}, v{vN_}")
    I(f"v_lshlrev_b32 v{vT+7}, 4, v{vT+7}")
    I(f"v_lshl_or_b32 v{vT+6}, v{vT+6}, 9, v{vT+7}")
    I(f"v_add_u32 v{vKA}, s{sLDSW}, v{vT+6}")
    for j in range(1, 4):
        I(f"v_xor_b32 v{vKA+j}, {j << 6}, v{vKA}")
    I(f"s_mov_b32 s{sSELLO}, 0x05040100")
    I(f"s_mov_b32 s{sSELHI}, 0x07060302")
    I(f"s_mov_b32 s{sSC}, {f32(math.log2(math.e)/16.0)}")
    I(f"s_cmp_eq_u32 s{sC}, 7")
    I(f"s_cselect_b32 s{sT1}, 0, {4096*896}")
    I(f"s_cselect_b32 s{sT2}, 0, {1792*896}")
    I(f"s_mov_b32 s{rWO}, s{sWO}")
    I(f"s_and_b32 s{rWO+1}, s{sWO+1}, 0xffff")
    I(f"s_mov_b32 s{rWO+2}, s{sT1}")
    I(f"s_mov_b32 s{rWO+3}, 0x20000")
    I(f"s_mov_b32 s{rW2}, s{sW2}")
    I(f"s_and_b32 s{rW2+1}, s{sW2+1}, 0xffff")
    I(f"s_mov_b32 s{rW2+2}, s{sT2}")
    I(f"s_mov_b32 s{rW2+3}, 0x20000")
    srd(rOUT, sOUT, 3584)
    I("s_waitcnt lgkmcnt(0)")
    stampx(23)
    I(f"s_add_u32 s{sTAG}, s{sTAG}, 1")
    if b0: I("s_barrier")
    stampx(24)
    I(f"s_waitcnt vmcnt({8*kfirst + vrole})")
    stamp(10)
    I(f"s_cmp_eq_u32 s{sTASK}, 0")
    I("s_cbranch_scc1 L_taskEnd")
    vA, vB, vC = vRING, vRING + 16, vRING + 80
    I(f"v_and_b32 v{vT}, 3, v{vLANE}")
    I(f"v_lshlrev_b32 v{vT}, 8, v{vT}")
    I(f"v_lshl_add_u32 v{vT}, v{vG_}, 3, v{vT}")
    I(f"s_lshl_b32 s{sT1}, s{sWAVE}, 10")
    I(f"s_add_u32 s{sT1}, s{sT1}, {XI}")
    I(f"v_add_u32 v{vT}, s{sT1}, v{vT}")
    I(f"v_lshrrev_b32 v{vT+1}, 2, v{vLANE}")
    I(f"v_and_b32 v{vT+2}, 6, v{vT+1}")
    I(f"v_bfe_u32 v{vT+3}, v{vLANE}, 1, 1")
    I(f"v_xor_b32 v{vT+2}, v{vT+2}, v{vT+3}")
    I(f"v_lshlrev_b32 v{vT+2}, 4, v{vT+2}")
    I(f"v_lshl_or_b32 v{vT+2}, v{vT+1}, 7, v{vT+2}")
    I(f"v_and_b32 v{vT+3}, 1, v{vLANE}")
    I(f"v_lshl_or_b32 v{vT+2}, v{vT+3}, 3, v{vT+2}")
    I(f"s_add_u32 s{sT1}, s{sLDSW}, 16384")
    I(f"v_add_u32 v{vT+8}, s{sT1}, v{vT+2}")
    for ct in range(1, 4):
        I(f"v_xor_b32 v{vT+8+ct}, {ct << 5}, v{vT+8}")
    for s_ in range(4):
        I(f"ds_read_b64 v[{vA+4*s_}:{vA+4*s_+1}], v{vT} offset:{s_*64}")
        I(f"ds_read_b64 v[{vA+4*s_+2}:{vA+4*s_+3}], v{vT} offset:{s_*64+32}")
    def b_reads(s_):
        for ct in range(4):
            d = vB + 16*s_ + 4*ct
            I(f"ds_read_b64_tr_b16 v[{d}:{d+1}], v{vT+8+ct} offset:{s_*4096}")
            I(f"ds_read_b64_tr_b16 v[{d+2}:{d+3}], v{vT+8+ct} offset:{s_*4096+2048}")
    I("s_waitcnt lgkmcnt(7)")
    b_reads(0)
    for s_ in range(4):
        if s_ < 3:
            I("s_waitcnt lgkmcnt(7)")
            b_reads(s_ + 1)
            I("s_waitcnt lgkmcnt(8)")
        else:
            I("s_waitcnt lgkmcnt(0)")
        for ct in range(4):
            d = vB + 16*s_ + 4*ct
            c = "0" if s_ == 0 else f"v[{vC+4*ct}:{vC+4*ct+3}]"
            I(f"v_mfma_f32_16x16x32_bf16 v[{vC+4*ct}:{vC+4*ct+3}], v[{vA+4*s_}:{vA+4*s_+3}], v[{d}:{d+3}], {c}")
    for ct, (lo, hi) in ((1, ("0xffff0000", "0")), (2, ("0", "0xffff")), (3, ("0", "0xffff0000"))):
        I(f"s_mov_b32 exec_lo, {lo}")
        I(f"s_mov_b32 exec_hi, {hi}")
        for r in range(4):
            I(f"v_mov_b32 v{vC+r}, v{vC+4*ct+r}")
    I("s_mov_b64 exec, -1")
    I(f"s_lshl_b32 s{sT1}, s{sWAVE}, 10")
    I(f"s_add_u32 s{sT1}, s{sT1}, {RT}")
    I(f"v_lshlrev_b32 v{vT+2}, 2, v{vLANE}")
    I(f"v_add_u32 v{vT+3}, s{sT1}, v{vT+2}")
    for r in range(4):
        I(f"ds_write_b32 v{vT+3}, v{vC+r} offset:{r*256}")
    I(f"s_lshl_b32 s{sT1}, s{sWAVE}, 8")
    I(f"s_add_u32 s{sT1}, s{sT1}, {RT}")
    I(f"v_add_u32 v{vT+3}, s{sT1}, v{vT+2}")
    I(f"s_mul_i32 s{sT1}, s{sWAVE}, s{sBSTR}")
    I(f"s_add_u32 s{sT1}, s{sT1}, s{sOUTB}")
    I(f"v_add_u32 v{vT+2}, s{sT1}, v{vT+2}")
    I(f"v_mov_b32 v{vT+13}, s{sTAG}")
    I("s_waitcnt lgkmcnt(0)")
    I("s_barrier")
    for w in range(4):
        I(f"ds_read_b32 v{vC+w}, v{vT+3} offset:{w*1024}")
    I("s_waitcnt lgkmcnt(0)")
    I(f"v_add_f32 v{vC}, v{vC}, v{vC+1}")
    I(f"v_add_f32 v{vC+2}, v{vC+2}, v{vC+3}")
    I(f"v_add_f32 v{vC}, v{vC}, v{vC+2}")
    I(f"v_max_f32 v{vC}, s{sLO}, v{vC}")
    I(f"v_mov_b32_dpp v{vC+1}, v{vC} quad_perm:[1,0,3,2] row_mask:0xf bank_mask:0xf")
    I(f"v_cvt_pk_bf16_f32 v{vT+12}, v{vC}, v{vC+1}")
    I("s_mov_b32 exec_lo, 0x55555555")
    I("s_mov_b32 exec_hi, 0x55555555")
    I(f"global_store_dwordx2 v{vT+2}, v[{vT+12}:{vT+13}], s[{sWS}:{sWS+1}] sc1")
    I("s_mov_b64 exec, -1")
    G.L("L_taskEnd")
    I(f"s_cmp_eq_u32 s{sWAVE}, 2")
    I("s_cbranch_scc0 L_roleEnd")
    xa, ga = vGX, vGX + 4
    I(f"v_mov_b32 v{vT}, 0")
    for j in range(4):
        I(f"v_lshlrev_b32 v{vT+1}, 16, v{xa+j}")
        I(f"v_lshlrev_b32 v{vT+2}, 16, v{ga+j}")
        I(f"v_and_b32 v{vT+3}, 0xffff0000, v{xa+j}")
        I(f"v_and_b32 v{vT+8}, 0xffff0000, v{ga+j}")
        I(f"v_fmac_f32 v{vT}, v{vT+1}, v{vT+2}")
        I(f"v_fmac_f32 v{vT}, v{vT+3}, v{vT+8}")
    for ror in (8, 4, 2, 1):
        I(f"v_add_f32_dpp v{vT}, v{vT}, v{vT} row_ror:{ror} row_mask:0xf bank_mask:0xf")
    xsum(vT, vT+1)
    I(f"v_mul_f32 v{vT}, {f32(-math.log2(math.e))}, v{vT}")
    I(f"v_exp_f32 v{vT}, v{vT}")
    I(f"v_add_f32 v{vT}, 1.0, v{vT}")
    I(f"v_rcp_f32 v{vT}, v{vT}")
    I(f"v_mov_b32 v{vT+1}, {M_G}")
    I(f"ds_write_b32 v{vT+1}, v{vT}")
    G.L("L_roleEnd")
    stamp(1)
    G.vm_bound = 8*kfirst + vrole + 1
    for t in range(kfirst, 4): k_tile(t)
    v_loads(vpre)
    I(f"s_lshl_b32 s{sT0}, s{sHKV}, 2")
    I(f"s_add_u32 s{sT0}, s{sT0}, s{sB}")
    I(f"s_lshl_b32 s{sT0}, s{sT0}, 11")
    I(f"s_lshl_b32 s{sT1}, s{sWAVE}, 9")
    I(f"s_add_u32 s{sT0}, s{sT0}, s{sT1}")
    I(f"v_lshlrev_b32 v{vA0}, 3, v{vLANE}")
    I(f"v_add_u32 v{vA0}, s{sT0}, v{vA0}")
    vq = vS
    qload = f"global_load_dwordx2 v[{vq}:{vq+1}], v{vA0}, s[{sWS}:{sWS+1}] sc1"
    G.window(Wc[0])
    stamp(11)
    qg = vm(qload)
    v_loads(cover)
    I(f"s_lshl_b32 s{sT1}, s{sWAVE}, 8")
    I(f"s_add_u32 s{sT1}, s{sT1}, {QI}")
    I(f"v_lshlrev_b32 v{vT}, 2, v{vLANE}")
    I(f"v_add_u32 v{vT}, s{sT1}, v{vT}")
    I(f"v_and_b32 v{vT+1}, 1, v{vLANE}")
    I(f"v_lshlrev_b32 v{vT+1}, 9, v{vT+1}")
    I(f"v_lshl_add_u32 v{vT+1}, v{vG_}, 4, v{vT+1}")
    I(f"v_add_u32 v{vT+1}, {QI}, v{vT+1}")
    G.vm_wait(qg)
    poll("q", lambda: I(qload), lambda: tagcheck([vq+1]))
    stamp(2)
    if W2 and wswitch == 'q': Wc[0] = W2
    I(f"ds_write_b32 v{vT}, v{vq}")
    I("s_waitcnt lgkmcnt(0)")
    if not nobar: I("s_barrier")
    for s_ in range(8):
        I(f"ds_read_b128 a[{aQ+4*s_}:{aQ+4*s_+3}], v{vT+1} offset:{s_*64}")
    def k_reads(t):
        if noqk: return
        for s in range(8):
            d = aKT + 32*(t & 1) + 4*s
            I(f"ds_read_b128 a[{d}:{d+3}], v{vKA + (s & 3)} offset:{slot(t)*8192 + (s >> 2)*256}")
    def qk_mfma(t):
        if noqk: return
        for s in range(8):
            d = aKT + 32*(t & 1) + 4*s
            c = "0" if s == 0 else f"v[{vS+4*t}:{vS+4*t+3}]"
            I(f"v_mfma_f32_16x16x32_bf16 v[{vS+4*t}:{vS+4*t+3}], a[{d}:{d+3}], a[{aQ+4*s}:{aQ+4*s+3}], {c}")
    vWD = vA0
    I(f"v_lshrrev_b32 v{vT+6}, 3, v{vLANE}")
    I(f"v_and_b32 v{vT+7}, 6, v{vT+6}")
    I(f"v_and_b32 v{vT+12}, 7, v{vLANE}")
    I(f"v_xor_b32 v{vT+7}, v{vT+7}, v{vT+12}")
    I(f"v_lshlrev_b32 v{vT+7}, 4, v{vT+7}")
    I(f"v_mul_u32_u24 v{vT+6}, 896, v{vT+6}")
    I(f"v_add_u32 v{vWD}, v{vT+6}, v{vT+7}")
    sWA, sWB_, sWC = sSTR, sSTG, sBSTR
    I(f"s_lshl_b32 s{sWA}, s{sHKV}, 9")
    I(f"s_lshl_b32 s{sT1}, s{sWAVE}, 7")
    I(f"s_add_u32 s{sWA}, s{sWA}, s{sT1}")
    I(f"s_mul_i32 s{sWA}, s{sWA}, 896")
    I(f"s_lshl_b32 s{sT1}, s{sC}, 7")
    I(f"s_add_u32 s{sWA}, s{sWA}, s{sT1}")
    I(f"s_mul_i32 s{sWB_}, s{sHKV}, 224")
    I(f"s_mul_i32 s{sT2}, s{sWAVE}, 56")
    I(f"s_add_u32 s{sWB_}, s{sWB_}, s{sT2}")
    I(f"s_mul_i32 s{sWB_}, s{sWB_}, 896")
    I(f"s_add_u32 s{sWB_}, s{sWB_}, s{sT1}")
    I(f"s_mul_i32 s{sWC}, s{sWAVE}, {7*1024}")
    I(f"s_add_u32 s{sWC}, s{sWC}, {W2I}")
    wnext = [0]; wl = [G.vm_n - 1]
    def w_loads(n):
        for _ in range(min(n, 23 - wnext[0])):
            i = wnext[0]; wnext[0] += 1
            if skip_w: continue
            if i < 16:
                I(f"s_add_u32 m0, s{sLDSW}, {16384 + i*1024}")
                if i: I(f"s_add_u32 s{sWA}, s{sWA}, {8*896}")
                G.window(Wc[0])
                wl[0] = vm(f"buffer_load_dwordx4 v{vWD}, s[{rWO}:{rWO+3}], s{sWA} offen {wf} lds")
            else:
                k = i - 16
                I(f"s_add_u32 m0, s{sWC}, {k*1024}")
                if k: I(f"s_add_u32 s{sWB_}, s{sWB_}, {8*896}")
                G.window(Wc[0])
                wl[0] = vm(f"buffer_load_dwordx4 v{vWD}, s[{rW2}:{rW2+3}], s{sWB_} offen {wf} lds")
    def mix(nw, nv):
        while nw > 0 or nv > 0:
            k = min(nw, 1); w_loads(k); nw -= k
            k = min(nv, 1); v_loads(k); nv -= k
    I("s_waitcnt lgkmcnt(0)")
    k_reads(0)
    for t in range(4):
        I("s_waitcnt lgkmcnt(0)")
        if t < 3: k_reads(t + 1)
        if t < 2: k_tile(t + 4)
        qk_mfma(t)
    mix(8, fill1)
    G.vm_wait(kidx[4])
    k_reads(4)
    I("s_waitcnt lgkmcnt(0)")
    G.vm_wait(kidx[5])
    k_reads(5)
    k_tile(6)
    qk_mfma(4)
    I("s_waitcnt lgkmcnt(0)")
    k_tile(7)
    qk_mfma(5)
    mix(8, fill2)
    vH, vHA = vT + 12, vT + 14
    I(f"s_mul_i32 s{sT0}, s{sB}, 896")
    I(f"s_mul_i32 s{sT1}, s{sHKV}, 112")
    I(f"s_add_u32 s{sT0}, s{sT0}, s{sT1}")
    I(f"s_mul_i32 s{sT1}, s{sWAVE}, 28")
    I(f"s_add_u32 s{sT0}, s{sT0}, s{sT1}")
    I(f"s_lshl_b32 s{sT0}, s{sT0}, 3")
    I(f"s_add_u32 s{sT0}, s{sT0}, {HOFF}")
    I(f"v_min_u32 v{vHA}, 27, v{vLANE}")
    I(f"v_lshlrev_b32 v{vHA}, 3, v{vHA}")
    I(f"v_add_u32 v{vHA}, s{sT0}, v{vHA}")
    hload = f"global_load_dwordx2 v[{vH}:{vH+1}], v{vHA}, s[{sWS}:{sWS+1}] sc1"
    hg = vm(hload)
    G.vm_wait(kidx[6])
    k_reads(6)
    I("s_waitcnt lgkmcnt(0)")
    G.vm_wait(kidx[7])
    k_reads(7)
    qk_mfma(6)
    I("s_waitcnt lgkmcnt(0)")
    qk_mfma(7)
    stamp(3)
    if W3: Wc[0] = W3
    mix(4, 4)
    stamp(12)
    vM, vL = vT, vT + 1
    I(f"v_max3_f32 v{vM}, v{vS}, v{vS+1}, v{vS+2}")
    for k in range(3, 31, 2):
        I(f"v_max3_f32 v{vM}, v{vM}, v{vS+k}, v{vS+k+1}")
    I(f"v_max_f32 v{vM}, v{vM}, v{vS+31}")
    xsum(vM, vT+6, "v_max_f32")
    I(f"v_mul_f32 v{vM}, s{sSC}, v{vM}")
    for k in range(0 if nosm else 32):
        I(f"v_fma_f32 v{vS+k}, v{vS+k}, s{sSC}, -v{vM}")
    for k in range(0 if nosm else 32):
        I(f"v_exp_f32 v{vS+k}, v{vS+k}")
    I(f"v_add_f32 v{vL}, v{vS}, v{vS+1}")
    for k in range(2, 32):
        I(f"v_add_f32 v{vL}, v{vL}, v{vS+k}")
    for k in range(16):
        I(f"v_cvt_pk_bf16_f32 v{vP+k}, v{vS+2*k}, v{vS+2*k+1}")
    xsum(vL, vT+6)
    I(f"v_and_b32 v{vT+2}, 1, v{vLANE}")
    I(f"v_lshlrev_b32 v{vT+2}, 4, v{vT+2}")
    I(f"v_add_u32 v{vT+2}, {MISC}, v{vT+2}")
    I(f"s_lshl_b32 s{sT1}, s{sWAVE}, 2")
    I(f"v_add_u32 v{vT+3}, s{sT1}, v{vT+2}")
    I(f"ds_write_b32 v{vT+3}, v{vM} offset:{M_MX - MISC}")
    I(f"ds_write_b32 v{vT+3}, v{vL} offset:{M_LS - MISC}")
    I(f"v_lshlrev_b32 v{tRW}, 3, v{vN_}")
    I(f"v_add_u32 v{tRW}, s{sLDSW}, v{tRW}")
    I(f"v_lshlrev_b32 v{vT+6}, 3, v0")
    I(f"v_mov_b32 v{tRR}, v{vT+6}")
    I(f"v_add_u32 v{tRR2}, 65536, v{vT+6}")
    I(f"s_lshl_b32 s{sT0}, s2, 11")
    I(f"s_add_u32 s{sT0}, s{sT0}, {ODOFF}")
    I(f"v_add_u32 v{tOD}, s{sT0}, v{vT+6}")
    I(f"s_lshl_b32 s{sT0}, s{sGRP}, 14")
    I(f"s_add_u32 s{sT0}, s{sT0}, {ODOFF + 0x1000}")
    I(f"v_add_u32 v{tG1}, s{sT0}, v{vT+6}")
    I(f"v_add_u32 v{tG2}, 0x2000, v{tG1}")
    I(f"s_lshl_b32 s{sT0}, s{sGRP}, 8")
    I(f"s_add_u32 s{sT0}, s{sT0}, {OSOFF}")
    I(f"v_and_b32 v{vT+6}, 31, v{vLANE}")
    I(f"v_lshlrev_b32 v{vT+6}, 3, v{vT+6}")
    I(f"v_add_u32 v{tGS}, s{sT0}, v{vT+6}")
    I(f"v_lshrrev_b32 v{vT+6}, 4, v0")
    I(f"v_and_b32 v{vT+7}, 7, v{vT+6}")
    I(f"v_lshrrev_b32 v{vT+6}, 3, v{vT+6}")
    I(f"v_lshl_add_u32 v{vT+7}, v{vT+6}, 7, v{vT+7}")
    I(f"v_lshl_add_u32 v{vT+7}, v{vN_}, 3, v{vT+7}")
    img_pos(tOI, vT+7, vT+6)
    I(f"v_add_u32 v{tOI}, {OI}, v{tOI}")
    I(f"s_lshl_b32 s{sT0}, s{sB}, 3")
    I(f"s_add_u32 s{sT0}, s{sT0}, s{sC}")
    I(f"s_lshl_b32 s{sT0}, s{sT0}, 12")
    I(f"s_lshl_b32 s{sT1}, s{sWAVE}, 7")
    I(f"s_add_u32 s{sT0}, s{sT0}, s{sT1}")
    I(f"s_add_u32 s{sT0}, s{sT0}, {YOFF}")
    I(f"v_lshlrev_b32 v{vT+6}, 3, v{vN_}")
    I(f"v_add_u32 v{vT+6}, s{sT0}, v{vT+6}")
    I(f"s_lshl_b32 s{sT1}, s{sHKV}, 9")
    I(f"v_add_u32 v{tYS}, s{sT1}, v{vT+6}")
    I(f"v_lshl_add_u32 v{tYG}, v{vG_}, 9, v{vT+6}")
    I(f"v_lshlrev_b32 v{tOUT}, 1, v{vN_}")
    I(f"v_mov_b32 v{tPO+1}, s{sTAG}")
    I(f"v_mov_b32 v{tPY+1}, s{sTAG}")
    I(f"s_mul_i32 s{sOUTS}, s{sB}, 896")
    I(f"s_lshl_b32 s{sT1}, s{sC}, 7")
    I(f"s_add_u32 s{sOUTS}, s{sOUTS}, s{sT1}")
    I(f"s_lshl_b32 s{sT1}, s{sWAVE}, 5")
    I(f"s_add_u32 s{sOUTS}, s{sOUTS}, s{sT1}")
    def pv(beta, h):
        j0 = beta*16 + h*8
        G.vm_wait(vidx[j0 + 7])
        if nopv: return
        for c4 in range(4):
            src = []
            for q in range(8):
                f, b0 = v_reg(j0 + q)
                if f == "a":
                    t = vRD + 8*(c4 & 1) + q
                    I(f"v_accvgpr_read_b32 v{t}, a{b0 + c4}")
                    src.append(t)
                else:
                    src.append(b0 + c4)
            for e, sel in ((0, sSELLO), (1, sSELHI)):
                pt = vPT + 8*(c4 & 1) + 4*e
                for i in range(4):
                    I(f"v_perm_b32 v{pt+i}, v{src[2*i+1]}, v{src[2*i]}, s{sel}")
            for e in (0, 1):
                pt = vPT + 8*(c4 & 1) + 4*e
                acc = aACC + 4*(h*8 + 2*c4 + e)
                c = "0" if beta == 0 else f"a[{acc}:{acc+3}]"
                I(f"v_mfma_f32_16x16x32_bf16 a[{acc}:{acc+3}], v[{vP+4*beta}:{vP+4*beta+3}], v[{pt}:{pt+3}], {c}")
    mix(3, vpost[0])
    assert skip_w or wnext[0] == 23
    pv(0, 0); v_loads(vpost[1]); pv(0, 1); v_loads(vpost[2])
    G.vm_wait(hg)
    I("s_mov_b64 exec, 0xfffffff")
    poll("h", lambda: I(hload), lambda: tagcheck([vH+1]))
    I(f"s_mul_i32 s{sT1}, s{sWAVE}, 56")
    I(f"v_lshlrev_b32 v{vT+6}, 1, v{vLANE}")
    I(f"v_add_u32 v{vT+6}, s{sT1}, v{vT+6}")
    img_pos(vT+7, vT+6, vT+8)
    I(f"v_add_u32 v{vT+7}, {HI}, v{vT+7}")
    I(f"ds_write_b32 v{vT+7}, v{vH}")
    I("s_mov_b64 exec, -1")
    pv(1, 0); v_loads(vpost[3]); pv(1, 1); v_loads(vpost[4])
    stamp(13)
    wlast = wl[0]
    vWB = vT + 9
    I(f"v_lshrrev_b32 v{vT+6}, 2, v{vLANE}")
    I(f"v_and_b32 v{vT+7}, 6, v{vT+6}")
    I(f"v_bfe_u32 v{vT+8}, v{vLANE}, 1, 1")
    I(f"s_lshl_b32 s{sT1}, s{sWAVE}, 1")
    I(f"v_or_b32 v{vT+8}, s{sT1}, v{vT+8}")
    I(f"v_xor_b32 v{vT+7}, v{vT+7}, v{vT+8}")
    I(f"v_lshlrev_b32 v{vT+7}, 4, v{vT+7}")
    I(f"v_lshl_or_b32 v{vT+7}, v{vT+6}, 7, v{vT+7}")
    I(f"v_and_b32 v{vT+8}, 1, v{vLANE}")
    I(f"v_lshl_or_b32 v{vWB}, v{vT+8}, 3, v{vT+7}")
    I(f"v_add_u32 v{vWB+1}, 65536, v{vWB}")
    I(f"v_lshlrev_b32 v{vWB+2}, 4, v{vG_}")
    I(f"v_add_u32 v{vWB+2}, {OI}, v{vWB+2}")
    I(f"v_add_u32 v{vWB+3}, {W2I}, v{vWB}")
    G.vm_wait(wlast)
    I("s_waitcnt lgkmcnt(0)")
    stamp(14)
    if not nobar: I("s_barrier")
    stamp(15)
    vR = vRD
    I(f"ds_read_b128 v[{vR}:{vR+3}], v{vT+2} offset:{M_MX - MISC}")
    I(f"ds_read_b128 v[{vR+4}:{vR+7}], v{vT+2} offset:{M_LS - MISC}")
    I(f"v_mov_b32 v{vT+6}, {M_G}")
    I(f"ds_read_b32 v{vT+6}, v{vT+6}")
    def wo_at(s):
        owner, k = divmod(s, 4)
        return (vWB + (owner >> 1), (owner & 1)*32768 + 16384 + k*4096)
    def w2_at(s):
        return (vWB + 3, s*4096)
    for s in range(6):
        a, o = w2_at(s)
        I(f"ds_read_b64_tr_b16 a[{aW2+4*s}:{aW2+4*s+1}], v{a} offset:{o}")
        I(f"ds_read_b64_tr_b16 a[{aW2+4*s+2}:{aW2+4*s+3}], v{a} offset:{o+2048}")
    I("s_waitcnt lgkmcnt(12)")
    I(f"v_readfirstlane_b32 s{sG}, v{vT+6}")
    I(f"v_max3_f32 v{vM}, v{vR}, v{vR+1}, v{vR+2}")
    I(f"v_max_f32 v{vM}, v{vM}, v{vR+3}")
    for w in range(4):
        I(f"v_sub_f32 v{vR+w}, v{vR+w}, v{vM}")
    for w in range(4):
        I(f"v_exp_f32 v{vR+w}, v{vR+w}")
    I(f"v_mul_f32 v{vL}, v{vR}, v{vR+4}")
    for w in range(1, 4):
        I(f"v_fmac_f32 v{vL}, v{vR+w}, v{vR+4+w}")
    for w in range(4):
        for h in range(2):
            I(f"v_readlane_b32 s{sF+2*w+h}, v{vR+w}, {h}")
    I(f"v_and_b32 v{vT+6}, 2, v{vLANE}")
    I(f"v_cmp_eq_u32 vcc, 0, v{vT+6}")
    I(f"v_cndmask_b32 v{vR+8}, v{vL}, v{vM}, vcc")
    I(f"v_mov_b32 v{vR+9}, s{sTAG}")
    I(f"s_lshl_b32 s{sT1}, s2, 5")
    I(f"s_add_u32 s{sT1}, s{sT1}, {OSOFF}")
    I(f"v_lshlrev_b32 v{vT+6}, 3, v{vLANE}")
    I(f"v_add_u32 v{vT+6}, s{sT1}, v{vT+6}")
    I(f"s_cmp_eq_u32 s{sWAVE}, 0")
    I("s_cbranch_scc0 L_nostat")
    I("s_mov_b64 exec, 0xf")
    I(f"global_store_dwordx2 v{vT+6}, v[{vR+8}:{vR+9}], s[{sWS}:{sWS+1}] sc1")
    I("s_mov_b64 exec, -1")
    G.L("L_nostat")
    G.vm_bound += 1
    s = 6
    a, o = w2_at(s)
    I(f"ds_read_b64_tr_b16 a[{aW2+4*s}:{aW2+4*s+1}], v{a} offset:{o}")
    I(f"ds_read_b64_tr_b16 a[{aW2+4*s+2}:{aW2+4*s+3}], v{a} offset:{o+2048}")
    vYB, vYA = vT + 12, vT + 4
    I("s_waitcnt lgkmcnt(0)")
    for s in range(7):
        I(f"ds_read_b128 v[{vR+4*(s%4)}:{vR+4*(s%4)+3}], v{vWB+2} offset:{HI - OI + s*64}")
        if s % 4 == 3 or s == 6:
            I("s_waitcnt lgkmcnt(0)")
            for s2 in range(s - (s % 4), s + 1):
                c = "0" if s2 == 0 else f"v[{vYB}:{vYB+3}]"
                I(f"v_mfma_f32_16x16x32_bf16 v[{vYB}:{vYB+3}], v[{vR+4*(s2%4)}:{vR+4*(s2%4)+3}], a[{aW2+4*s2}:{aW2+4*s2+3}], {c}")
    for quarter in range(4):
        for s in range(4*quarter, 4*quarter + 4):
            a, o = wo_at(s)
            I(f"ds_read_b64_tr_b16 a[{aWO+4*s}:{aWO+4*s+1}], v{a} offset:{o}")
            I(f"ds_read_b64_tr_b16 a[{aWO+4*s+2}:{aWO+4*s+3}], v{a} offset:{o+2048}")
        I("s_waitcnt lgkmcnt(0)")
    v_loads(64)
    stamp(4)
    def red_writes(lo):
        I("s_mov_b64 exec, 0xffff")
        for i in range(lo, lo + 8):
            I(f"ds_write_b64 v{tRW}, a[{aACC+4*i}:{aACC+4*i+1}] offset:{i*128}")
        I("s_mov_b64 exec, -1")
    pv(2, 0); pv(2, 1); pv(3, 0)
    red_writes(0)
    pv(3, 1)
    stamp(5)
    red_writes(8)
    I("s_waitcnt lgkmcnt(0)")
    I("s_barrier")
    vR = vRING
    for w in range(4):
        I(f"ds_read_b64 v[{vR+2*w}:{vR+2*w+1}], v{tRR if w < 2 else tRR2} offset:{(w & 1)*32768}")
    for w in range(4):
        I(f"s_waitcnt lgkmcnt({3-w})")
        for h in range(2):
            if w == 0: I(f"v_mul_f32 v{vR+8+h}, s{sF+h}, v{vR+h}")
            else: I(f"v_fmac_f32 v{vR+8+h}, s{sF+2*w+h}, v{vR+2*w+h}")
    I(f"v_cvt_pk_bf16_f32 v{tPO}, v{vR+8}, v{vR+9}")
    I(f"global_store_dwordx2 v{tOD}, v[{tPO}:{tPO+1}], s[{sWS}:{sWS+1}] sc1")
    stamp(6)
    I(f"s_cmp_eq_u32 s{sC}, 7")
    I("s_cbranch_scc1 L_fin")
    vO = vRING + 16
    vSt = vRING + 32
    def s_load():
        I(f"global_load_dwordx2 v[{vSt}:{vSt+1}], v{tGS}, s[{sWS}:{sWS+1}] sc1")
    def o_loads():
        for k in range(8):
            a = tG1 if k < 4 else tG2
            I(f"global_load_dwordx2 v[{vO+2*k}:{vO+2*k+1}], v{a}, s[{sWS}:{sWS+1}] offset:{(k & 3)*2048 - 4096} sc1")
    s_load()
    o_loads()
    I("s_waitcnt vmcnt(8)")
    poll("s", s_load, lambda: tagcheck([vSt+1]))
    vW0 = vSt + 2
    I(f"v_mov_b32_dpp v{vW0}, v{vSt} row_shr:2 row_mask:0xf bank_mask:0xf")
    I(f"v_mov_b32 v{vW0+1}, v{vW0}")
    for ror in (4, 8):
        I(f"v_max_f32_dpp v{vW0+1}, v{vW0+1}, v{vW0+1} row_ror:{ror} row_mask:0xf bank_mask:0xf")
    I(f"v_mov_b32 v{vW0+2}, v{vW0+1}")
    I(f"v_permlane16_swap_b32 v{vW0+1}, v{vW0+2}")
    I(f"v_max_f32 v{vW0+1}, v{vW0+1}, v{vW0+2}")
    I(f"v_sub_f32 v{vW0}, v{vW0}, v{vW0+1}")
    I(f"v_exp_f32 v{vW0}, v{vW0}")
    I(f"v_mul_f32 v{vW0+1}, v{vW0}, v{vSt}")
    for ror in (4, 8):
        I(f"v_add_f32_dpp v{vW0+1}, v{vW0+1}, v{vW0+1} row_ror:{ror} row_mask:0xf bank_mask:0xf")
    I(f"v_mov_b32 v{vW0+2}, v{vW0+1}")
    I(f"v_permlane16_swap_b32 v{vW0+1}, v{vW0+2}")
    I(f"v_add_f32 v{vW0+1}, v{vW0+1}, v{vW0+2}")
    I(f"v_rcp_f32 v{vW0+1}, v{vW0+1}")
    I(f"v_mul_f32 v{vW0}, v{vW0}, v{vW0+1}")
    for k in range(8):
        for h in range(2):
            I(f"v_readlane_b32 s{sWT+2*k+h}, v{vW0}, {4*k+2+h}")
    I("s_waitcnt vmcnt(0)")
    stamp(16)
    poll("o", o_loads, lambda: tagcheck([vO+2*k+1 for k in range(8)]))
    stamp(17)
    vo0, vo1 = vW0+3, vW0+4
    for k in range(8):
        I(f"v_lshlrev_b32 v{vW0+5}, 16, v{vO+2*k}")
        I(f"v_and_b32 v{vW0+6}, 0xffff0000, v{vO+2*k}")
        if k == 0:
            I(f"v_mul_f32 v{vo0}, s{sWT}, v{vW0+5}")
            I(f"v_mul_f32 v{vo1}, s{sWT+1}, v{vW0+6}")
        else:
            I(f"v_fmac_f32 v{vo0}, s{sWT+2*k}, v{vW0+5}")
            I(f"v_fmac_f32 v{vo1}, s{sWT+2*k+1}, v{vW0+6}")
    I(f"v_cvt_pk_bf16_f32 v{vo0}, v{vo0}, v{vo1}")
    I(f"ds_write_b16 v{tOI}, v{vo0}")
    I(f"ds_write_b16_d16_hi v{tOI}, v{vo0} offset:512")
    I("s_waitcnt lgkmcnt(0)")
    I("s_barrier")
    vOA = vRING + 64
    for s in range(16):
        I(f"ds_read_b128 v[{vOA+4*s}:{vOA+4*s+3}], v{vWB+2} offset:{s*64}")
        if s == 11: I("s_waitcnt lgkmcnt(4)")
    for s in range(16):
        if s == 8: I("s_waitcnt lgkmcnt(0)")
        c = "0" if s == 0 else f"v[{vYA}:{vYA+3}]"
        I(f"v_mfma_f32_16x16x32_bf16 v[{vYA}:{vYA+3}], v[{vOA+4*s}:{vOA+4*s+3}], a[{aWO+4*s}:{aWO+4*s+3}], {c}")
    I(f"v_sub_f32 v{tPY}, v{vYA}, v{vYB}")
    I(f"v_fma_f32 v{tPY}, v{tPY}, s{sG}, v{vYB}")
    I("s_mov_b64 exec, 0xffff")
    I(f"global_store_dwordx2 v{tYS}, v[{tPY}:{tPY+1}], s[{sWS}:{sWS+1}] sc1")
    I("s_mov_b64 exec, -1")
    stamp(18)
    I(f"s_sub_u32 s{sT1}, 7, s{sB}")
    I(f"s_cmp_eq_u32 s{sS}, s{sT1}")
    I("s_cbranch_scc0 L_fin")
    vY = vO
    def y_loads():
        I(f"global_load_dwordx2 v[{vY}:{vY+1}], v{tYG}, s[{sWS}:{sWS+1}] sc1")
        I(f"global_load_dwordx2 v[{vY+2}:{vY+3}], v{tYG}, s[{sWS}:{sWS+1}] offset:2048 sc1")
    y_loads()
    I("s_waitcnt vmcnt(0)")
    poll("y", y_loads, lambda: tagcheck([vY+1, vY+3]))
    I(f"v_add_f32 v{vY}, v{vY}, v{vY+2}")
    xsum(vY, vY+1)
    I(f"v_cvt_pk_bf16_f32 v{vY}, v{vY}, v{vY}")
    I("s_mov_b64 exec, 0xffff")
    I(f"buffer_store_short v{vY}, v{tOUT}, s[{rOUT}:{rOUT+3}], s{sOUTS} offen")
    I("s_mov_b64 exec, -1")
    I("s_cmp_eq_u32 s2, 15")
    I("s_cbranch_scc0 L_fin")
    I(f"s_cmp_eq_u32 s{sWAVE}, 0")
    I("s_cbranch_scc0 L_fin")
    I(f"v_min_u32 v{vY+4}, 23, v{vLANE}")
    I(f"v_lshrrev_b32 v{vY+5}, 3, v{vY+4}")
    I(f"v_add_u32 v{vY+5}, 1, v{vY+5}")
    I(f"v_lshlrev_b32 v{vY+5}, 15, v{vY+5}")
    I(f"v_and_b32 v{vY+4}, 7, v{vY+4}")
    I(f"v_lshl_add_u32 v{vY+5}, v{vY+4}, 9, v{vY+5}")
    I(f"v_add_u32 v{vY+5}, {YOFF}, v{vY+5}")
    eload = f"global_load_dwordx2 v[{vY+6}:{vY+7}], v{vY+5}, s[{sWS}:{sWS+1}] sc1"
    I(eload)
    I("s_waitcnt vmcnt(0)")
    poll("e", lambda: I(eload), lambda: tagcheck([vY+7]))
    I(f"v_mov_b32 v{vY}, s{sTAG}")
    I(f"v_mov_b32 v{vY+1}, {EPOCH}")
    I("s_mov_b64 exec, 1")
    I(f"global_store_dword v{vY+1}, v{vY}, s[{sWS}:{sWS+1}] sc1")
    I("s_mov_b64 exec, -1")
    G.L("L_fin")
    if spin_to:
        I("s_cmp_eq_u32 s2, 15")
        I("s_cbranch_scc0 L_end")
        I(f"s_add_u32 s{sT1}, s{sSTAMP}, {spin_to}")
        G.L("L_sp")
        I(f"s_memrealtime s[{sP0}:{sP0+1}]")
        I("s_waitcnt lgkmcnt(0)")
        I(f"s_sub_u32 s{sT0}, s{sP0}, s{sT1}")
        I(f"s_cmp_lt_i32 s{sT0}, 0")
        I("s_cbranch_scc1 L_sp")
    if stamps:
        stamp(7)
        I(f"s_cmp_eq_u32 s{sWAVE}, {swave}")
        I("s_cbranch_scc0 L_end")
        I(f"s_mul_i32 s{sT0}, s2, 64")
        I(f"s_add_u32 s{sT0}, s{sT0}, {STAMP_OFF}")
        I(f"v_mov_b32 v{vT}, s{sT0}")
        I("s_mov_b64 exec, 1")
        for k in range(8):
            I(f"v_mov_b32 v{vT+2}, s{sSTAMP+2*k}")
            I(f"v_mov_b32 v{vT+3}, s{sSTAMP+2*k+1}")
            I(f"global_store_dwordx2 v{vT}, v[{vT+2}:{vT+3}], s[{sWS}:{sWS+1}] offset:{8*k}")
    G.L("L_end")
    I("s_endpgm")
    G.L("L_code_end")
    return G

HEADER = open("gated_mix__gqa_block_cached__dense_activation_relu__decode.s.ref").read().split("; Override launch")[0]

def emit(path, **kw):
    G = gen(**kw)
    for p in check_async(G.lines): print("ASYNC:", p)
    body, nn = G.text()
    src = HEADER + f"""; Override launch geometry by editing the next line (default: block=256,
; grid=ceil(out_elems/256), lds=0). Harness parses it; keep it on one line.
; @launch grid=(256,1,1) block=(256,1,1) lds={LDS_BYTES}
.amdgcn_target "amdgcn-amd-amdhsa--gfx950"
.text
.globl {NAME}
.p2align 8
.type {NAME},@function
{NAME}:
{body}
.section .rodata,"a"
.p2align 6
.amdhsa_kernel {NAME}
  .amdhsa_next_free_vgpr 512
  .amdhsa_next_free_sgpr 102
  .amdhsa_accum_offset 256
  .amdhsa_group_segment_fixed_size 0
  .amdhsa_kernarg_size 96
  .amdhsa_user_sgpr_count 2
  .amdhsa_user_sgpr_kernarg_segment_ptr 1
  .amdhsa_system_sgpr_workgroup_id_x 1
.end_amdhsa_kernel
"""
    open(path, "w").write(src)
    return nn

if __name__ == "__main__":
    out = sys.argv[1] if len(sys.argv) > 1 else "k.s"
    kw = eval("dict(" + (sys.argv[2] if len(sys.argv) > 2 else "") + ")")
    print("nops inserted:", emit(out, **kw))
```

```python
import sys, struct, math
from asmlib import Gen, check_async

NAME = "gated_mix__gqa_block_cached__dense_activation_relu__decode_kernel"

QOFF, HOFF, ODOFF, OSOFF, YOFF, EPOCH = 0x0, 0x10000, 0x40000, 0xC0000, 0xD0000, 0xF8000
STAMP_OFF = 200 << 20
W2I = 131072
XI, RT = W2I, W2I + 4096
QI, OI, HI, MISC = 159744, 160768, 161792, 162304
M_G, M_MX, M_LS = MISC + 4, MISC + 16, MISC + 64
LDS_BYTES = 163840
sX, sK, sV, sWQ, sWO, sBX, sW1, sW2, sGW, sOUT, sDBG, sWS = 4, 6, 8, 10, 12, 14, 16, 18, 20, 22, 24, 26
rK, rV, rW, rX, rWO, rW2, rOUT, rG = 28, 32, 36, 40, 44, 48, 56, 60
sOUTB, sBSTR, sLO, sTASK = 52, 53, 54, 55
sWAVE = 3
sGRP, sS, sB, sHKV, sC, sT0, sLDSW, sKV, sTAG, sG, sSELLO, sSELHI, sSC = 64, 65, 66, 67, 68, 69, 70, 71, 72, 73, 74, 75, 76
sSTR, sSTG, sVB = 77, 78, 79
sSTAMP = 80
sP0, sP1, sT1, sT2 = 96, 98, 100, 101
sWT = 4
sF = 36
sOUTS = 52
vLANE = 1
vTR = 0
vKD = 2
vKA = 10
vVO = 14
vA0 = 15
vT = 16
vGX = 232
vG_, vN_ = 20, 21
vS = 32
vTA = 32
vRD = 48
vPT = 64
vRING = 80
vP = 240
aACC, aQ, aKT, aV = 0, 64, 96, 160
aWO, aW2 = 64, 128
tRW, tRR, tOD, tG1, tG2, tGS, tOI, tYS, tYG, tOUT, tRR2 = range(vTA, vTA + 11)
tPO, tPY = vTA + 12, vTA + 14

def f32(x):
    return "0x%08x" % struct.unpack("<I", struct.pack("<f", x))[0]

def gen(trace=False, dbgstart=False, W=16, stamps=False, vpre=8, code_pf=True, spin=100000, wf='nt', rbar=True, kfirst=2, cover=12,
        spin_to=0, pretouch=True, vmid=16, vrole=8, winfirst=False, fill1=8, fill2=8, vpost=(1,1,2,2,0), b0=False, nobar=False, nopv=False, nosm=False, noqk=False, skip_w=False, nopoll=(), norole=False, W3=None, swave=0, spts=(1,2,3,4,5,6,7), W2=None, wswitch='q'):
    G = Gen()
    Wc = [W]
    I, vm = G.I, G.vm
    nst = [0]
    def stamp(pt=None):
        if stamps and (pt is None or pt in spts):
            k = nst[0]; nst[0] += 1
            assert k < 8
            I(f"s_memrealtime s[{sSTAMP+2*k}:{sSTAMP+2*k+1}]")
            I("s_waitcnt lgkmcnt(0)")
    def stampx(pt):
        if stamps and pt in spts:
            k = nst[0]; nst[0] += 1
            I(f"s_memrealtime s[{sSTAMP+2*k}:{sSTAMP+2*k+1}]")
    trl = []
    def tr(label):
        if trace:
            k = len(trl); trl.append(label)
            assert k < 64
            I(f"s_memrealtime s[{sP1}:{sP1+1}]")
            I("s_waitcnt lgkmcnt(0)")
            I(f"v_writelane_b32 v{vTR}, s{sP1}, {k}")
    G.trl = trl
    def srd(r, p, size):
        I(f"s_mov_b32 s{r}, s{p}")
        I(f"s_and_b32 s{r+1}, s{p+1}, 0xffff")
        I(f"s_mov_b32 s{r+2}, {size}")
        I(f"s_mov_b32 s{r+3}, 0x20000")
    def xsum(v, t, op="v_add_f32"):
        I(f"v_mov_b32 v{t}, v{v}")
        I(f"v_permlane16_swap_b32 v{v}, v{t}")
        I(f"{op} v{v}, v{v}, v{t}")
        I(f"v_mov_b32 v{t}, v{v}")
        I(f"v_permlane32_swap_b32 v{v}, v{t}")
        I(f"{op} v{v}, v{v}, v{t}")
    def poll(name, reload, check):
        if name in nopoll: return
        I(f"s_mov_b32 s{sT2}, 0")
        G.L(f"L_{name}_chk")
        check()
        I(f"s_cbranch_vccz L_{name}_ok")
        I(f"s_add_u32 s{sT2}, s{sT2}, 1")
        I(f"s_cmp_gt_u32 s{sT2}, {spin}")
        I(f"s_cbranch_scc1 L_{name}_ok")
        reload()
        I("s_waitcnt vmcnt(0)")
        I(f"s_branch L_{name}_chk")
        G.L(f"L_{name}_ok")
    def tagcheck(regs):
        I(f"v_cmp_ne_u32 vcc, s{sTAG}, v{regs[0]}")
        for r in regs[1:]:
            I(f"v_cmp_ne_u32 s[{sP0}:{sP0+1}], s{sTAG}, v{r}")
            I(f"s_or_b64 vcc, vcc, s[{sP0}:{sP0+1}]")
    def img_pos(dst, row, t):
        I(f"v_lshrrev_b32 v{dst}, 5, v{row}")
        I(f"v_lshlrev_b32 v{dst}, 6, v{dst}")
        I(f"v_bfe_u32 v{t}, v{row}, 2, 2")
        I(f"v_lshl_add_u32 v{dst}, v{t}, 4, v{dst}")
        I(f"v_bfe_u32 v{t}, v{row}, 4, 1")
        I(f"v_lshl_add_u32 v{dst}, v{t}, 3, v{dst}")
        I(f"v_and_b32 v{t}, 3, v{row}")
        I(f"v_lshl_add_u32 v{dst}, v{t}, 1, v{dst}")

    if dbgstart:
        I(f"s_memrealtime s[{sSTAMP}:{sSTAMP+1}]")
    if stamps or spin_to:
        I(f"s_memrealtime s[{sSTAMP}:{sSTAMP+1}]"); nst[0] = 1
        for k in range(1, 8): I(f"s_mov_b64 s[{sSTAMP+2*k}:{sSTAMP+2*k+1}], 0")
    I("s_cmp_ge_u32 s2, 256")
    I("s_cbranch_scc1 L_end")
    I("s_load_dwordx16 s[4:19], s[0:1], 0")
    I("s_load_dwordx8 s[20:27], s[0:1], 64")
    I(f"v_lshrrev_b32 v{vT}, 6, v0")
    I(f"v_and_b32 v{vLANE}, 63, v0")
    I(f"v_readfirstlane_b32 s{sWAVE}, v{vT}")
    if code_pf:
        I(f"s_cmp_eq_u32 s{sWAVE}, 3")
        I("s_cbranch_scc0 L_nopf")
        I(f"s_getpc_b64 s[{sP0}:{sP0+1}]")
        G.L("L_pc")
        I(f"s_sub_u32 s{sP0}, s{sP0}, L_pc-{NAME}")
        I(f"s_subb_u32 s{sP0+1}, s{sP0+1}, 0")
        I(f"v_lshlrev_b32 v{vT+1}, 7, v{vLANE}")
        for k in range(3):
            I(f"v_min_u32 v{vT+2}, L_code_end-{NAME}-4, v{vT+1}")
            I(f"global_load_dword v{vP+15}, v{vT+2}, s[{sP0}:{sP0+1}]")
            if k < 2: I(f"v_add_u32 v{vT+1}, 0x2000, v{vT+1}")
        G.L("L_nopf")
    I(f"s_lshr_b32 s{sGRP}, s2, 3")
    I(f"s_and_b32 s{sS}, s2, 7")
    I(f"s_lshr_b32 s{sB}, s{sGRP}, 3")
    I(f"s_and_b32 s{sHKV}, s{sGRP}, 7")
    I(f"s_add_u32 s{sC}, s{sS}, s{sHKV}")
    I(f"s_and_b32 s{sC}, s{sC}, 7")
    I(f"s_lshl_b32 s{sLDSW}, s{sWAVE}, 15")
    I(f"s_lshl_b32 s{sKV}, s{sGRP}, 21")
    I(f"s_lshl_b32 s{sT0}, s{sC}, 18")
    I(f"s_add_u32 s{sKV}, s{sKV}, s{sT0}")
    I(f"s_lshl_b32 s{sT0}, s{sWAVE}, 13")
    I(f"s_add_u32 s{sKV}, s{sKV}, s{sT0}")
    I(f"v_lshrrev_b32 v{vT}, 5, v{vLANE}")
    I(f"v_and_b32 v{vT+1}, 31, v{vLANE}")
    I(f"v_lshlrev_b32 v{vT+2}, 2, v{vT}")
    I(f"v_xor_b32 v{vT+1}, v{vT+1}, v{vT+2}")
    I(f"v_lshlrev_b32 v{vT+1}, 4, v{vT+1}")
    I(f"v_lshl_or_b32 v{vKD}, v{vT}, 9, v{vT+1}")
    for i in range(1, 8):
        I(f"v_xor_b32 v{vKD+i}, {(8*(i&1) + (i>>1)) << 4}, v{vKD}")
    I(f"v_lshrrev_b32 v{vG_}, 4, v{vLANE}")
    I(f"v_and_b32 v{vN_}, 15, v{vLANE}")
    I("s_waitcnt lgkmcnt(0)")
    stamp(20)
    I(f"s_load_dword s{sTAG}, s[{sWS}:{sWS+1}], {EPOCH}")
    srd(rK, sK, 0x4000000)
    I(f"s_mov_b32 s{sTASK}, 0")
    if norole: I("s_branch L_roleDone")
    I(f"s_cmp_eq_u32 s{sWAVE}, 2")
    I("s_cbranch_scc0 L_noGateLoads")
    srd(rG, sGW, 896)
    I(f"s_mul_i32 s{sT0}, s{sB}, 896")
    I(f"s_add_u32 s{rX}, s{sX}, s{sT0}")
    I(f"s_addc_u32 s{rX+1}, s{sX+1}, 0")
    I(f"s_and_b32 s{rX+1}, s{rX+1}, 0xffff")
    I(f"s_mov_b32 s{rX+2}, 896")
    I(f"s_mov_b32 s{rX+3}, 0x20000")
    I(f"v_lshlrev_b32 v{vT}, 4, v{vLANE}")
    I(f"buffer_load_dwordx4 v[{vGX}:{vGX+3}], v{vT}, s[{rX}:{rX+3}], 0 offen")
    I(f"buffer_load_dwordx4 v[{vGX+4}:{vGX+7}], v{vT}, s[{rG}:{rG+3}], 0 offen")
    G.L("L_noGateLoads")
    I(f"s_and_b32 s{sT0}, s{sS}, 1")
    I(f"s_cmp_eq_u32 s{sT0}, 0")
    I("s_cbranch_scc0 L_roleDone")
    I(f"s_lshl_b32 s{sT0}, s{sHKV}, 2")
    I(f"s_lshr_b32 s{sT1}, s{sS}, 1")
    I(f"s_add_u32 s{sT0}, s{sT0}, s{sT1}")
    I(f"s_cmp_lt_u32 s{sT0}, 23")
    I("s_cbranch_scc0 L_roleDone")
    I(f"s_mul_i32 s{sT1}, s{sB}, 23")
    I(f"s_add_u32 s{sT0}, s{sT0}, s{sT1}")
    I(f"s_cmp_lt_u32 s{sT0}, 64")
    I("s_cbranch_scc1 L_roleQ")
    I(f"s_sub_u32 s{sT0}, s{sT0}, 64")
    I(f"s_lshl_b32 s{sT1}, s{sT0}, 7")
    I(f"s_add_u32 s{rW}, s{sW1}, s{sT1}")
    I(f"s_addc_u32 s{rW+1}, s{sW1+1}, 0")
    I(f"s_sub_u32 s{rW+2}, {448*3584}, s{sT1}")
    I(f"s_movk_i32 s{sSTR}, 3584")
    I(f"s_lshl_b32 s{sOUTB}, s{sT0}, 8")
    I(f"s_add_u32 s{sOUTB}, s{sOUTB}, {HOFF}")
    I(f"s_movk_i32 s{sBSTR}, 7168")
    I(f"s_mov_b32 s{sLO}, 0")
    I("s_branch L_taskLoads")
    G.L("L_roleQ")
    I(f"s_lshl_b32 s{sT1}, s{sT0}, 7")
    I(f"s_add_u32 s{rW}, s{sWQ}, s{sT1}")
    I(f"s_addc_u32 s{rW+1}, s{sWQ+1}, 0")
    I(f"s_sub_u32 s{rW+2}, {448*8192}, s{sT1}")
    I(f"s_movk_i32 s{sSTR}, 8192")
    I(f"s_lshr_b32 s{sT1}, s{sT0}, 3")
    I(f"s_lshl_b32 s{sOUTB}, s{sT1}, 13")
    I(f"s_and_b32 s{sT1}, s{sT0}, 7")
    I(f"s_lshl_b32 s{sT1}, s{sT1}, 8")
    I(f"s_add_u32 s{sOUTB}, s{sOUTB}, s{sT1}")
    I(f"s_movk_i32 s{sBSTR}, 2048")
    I(f"s_mov_b32 s{sLO}, 0xff800000")
    G.L("L_taskLoads")
    I(f"s_and_b32 s{rW+1}, s{rW+1}, 0xffff")
    I(f"s_mov_b32 s{rW+3}, 0x20000")
    srd(rX, sX, 3584)
    I(f"v_mul_u32_u24 v{vT}, 896, v{vG_}")
    I(f"v_lshl_add_u32 v{vT}, v{vN_}, 4, v{vT}")
    I(f"s_lshl_b32 s{sT0}, s{sWAVE}, 8")
    I(f"s_lshl_b32 s{sT1}, s{sWAVE}, 10")
    I(f"s_add_u32 m0, s{sT1}, {XI}")
    I(f"v_lshrrev_b32 v{vT+1}, 3, v{vLANE}")
    I(f"buffer_load_dwordx4 v{vT}, s[{rX}:{rX+3}], s{sT0} offen {wf} lds")
    I(f"v_and_b32 v{vT+2}, 6, v{vT+1}")
    I(f"v_and_b32 v{vT+3}, 7, v{vLANE}")
    I(f"v_xor_b32 v{vT+2}, v{vT+2}, v{vT+3}")
    I(f"v_mul_lo_u32 v{vT+1}, v{vT+1}, s{sSTR}")
    I(f"v_lshl_add_u32 v{vT+1}, v{vT+2}, 4, v{vT+1}")
    I(f"s_lshl_b32 s{sT1}, s{sSTR}, 3")
    I(f"s_lshl_b32 s{sT0}, s{sWAVE}, 7")
    I(f"s_mul_i32 s{sT0}, s{sT0}, s{sSTR}")
    for i in range(16):
        I(f"s_add_u32 m0, s{sLDSW}, {16384 + i*1024}")
        if i: I(f"s_add_u32 s{sT0}, s{sT0}, s{sT1}")
        I(f"buffer_load_dwordx4 v{vT+1}, s[{rW}:{rW+3}], s{sT0} offen {wf} lds")
    I(f"s_mov_b32 s{sTASK}, 1")
    G.L("L_roleDone")
    if rbar: I("s_barrier")
    stampx(21)
    G.vm_n = 0; G.vm_bound = 20
    kidx = {}
    def slot(t): return t if t < 4 else (t & 1)
    def k_tile(t, win=True):
        I(f"s_add_u32 s{sT0}, s{sKV}, {t*32768}")
        for i in range(8):
            if i % 4 == 0:
                if i == 4: I(f"s_add_u32 s{sT0}, s{sT0}, 4096")
                I(f"s_add_u32 m0, s{sLDSW}, {slot(t)*8192 + (i>>2)*4096}")
            if win: G.window(Wc[0])
            kidx[t] = vm(f"buffer_load_dwordx4 v{vKD+i}, s[{rK}:{rK+3}], s{sT0} offen offset:{(i&3)*1024} nt lds")
    vidx = {}
    def v_reg(j):
        return ("a", aV + 4*j) if j < 24 else ("v", vRING + 4*(j-24))
    vcur = [None]; vnext = [0]; vlimit = [64]
    def v_loads(n, win=True):
        for _ in range(min(n, vlimit[0] - vnext[0])):
            j = vnext[0]; vnext[0] += 1
            beta, h, tp, r = j >> 4, (j >> 3) & 1, (j >> 2) & 1, j & 3
            base = (2*beta + tp)*32768 + (r >> 1)*4096
            if vcur[0] != base:
                I(f"s_add_u32 s{sVB}, s{sKV}, {base}")
                vcur[0] = base
            if win: G.window(Wc[0])
            f, b0 = v_reg(j)
            vidx[j] = vm(f"buffer_load_dwordx4 {f}[{b0}:{b0+3}], v{vVO}, s[{rV}:{rV+3}], s{sVB} offen offset:{(r&1)*2048 + h*256} nt")
    G.vm_bound = 20
    for t in range(kfirst): k_tile(t, win=winfirst)
    srd(rV, sV, 0x4000000)
    I(f"v_lshlrev_b32 v{vVO}, 9, v{vG_}")
    I(f"v_lshl_or_b32 v{vVO}, v{vN_}, 4, v{vVO}")
    v_loads(vrole, win=winfirst)
    stampx(22)
    I(f"v_and_b32 v{vT+6}, 3, v{vN_}")
    I(f"v_lshrrev_b32 v{vT+7}, 2, v{vN_}")
    I(f"v_lshl_or_b32 v{vT+6}, v{vT+6}, 2, v{vT+7}")
    I(f"v_xor_b32 v{vT+7}, v{vG_}, v{vN_}")
    I(f"v_lshlrev_b32 v{vT+7}, 4, v{vT+7}")
    I(f"v_lshl_or_b32 v{vT+6}, v{vT+6}, 9, v{vT+7}")
    I(f"v_add_u32 v{vKA}, s{sLDSW}, v{vT+6}")
    for j in range(1, 4):
        I(f"v_xor_b32 v{vKA+j}, {j << 6}, v{vKA}")
    I(f"s_mov_b32 s{sSELLO}, 0x05040100")
    I(f"s_mov_b32 s{sSELHI}, 0x07060302")
    I(f"s_mov_b32 s{sSC}, {f32(math.log2(math.e)/16.0)}")
    I(f"s_cmp_eq_u32 s{sC}, 7")
    I(f"s_cselect_b32 s{sT1}, 0, {4096*896}")
    I(f"s_cselect_b32 s{sT2}, 0, {1792*896}")
    I(f"s_mov_b32 s{rWO}, s{sWO}")
    I(f"s_and_b32 s{rWO+1}, s{sWO+1}, 0xffff")
    I(f"s_mov_b32 s{rWO+2}, s{sT1}")
    I(f"s_mov_b32 s{rWO+3}, 0x20000")
    I(f"s_mov_b32 s{rW2}, s{sW2}")
    I(f"s_and_b32 s{rW2+1}, s{sW2+1}, 0xffff")
    I(f"s_mov_b32 s{rW2+2}, s{sT2}")
    I(f"s_mov_b32 s{rW2+3}, 0x20000")
    srd(rOUT, sOUT, 3584)
    I("s_waitcnt lgkmcnt(0)")
    stampx(23)
    I(f"s_add_u32 s{sTAG}, s{sTAG}, 1")
    if b0: I("s_barrier")
    stampx(24)
    I(f"s_waitcnt vmcnt({8*kfirst + vrole})")
    stamp(10)
    I(f"s_cmp_eq_u32 s{sTASK}, 0")
    I("s_cbranch_scc1 L_taskEnd")
    vA, vB, vC = vRING, vRING + 16, vRING + 80
    I(f"v_and_b32 v{vT}, 3, v{vLANE}")
    I(f"v_lshlrev_b32 v{vT}, 8, v{vT}")
    I(f"v_lshl_add_u32 v{vT}, v{vG_}, 3, v{vT}")
    I(f"s_lshl_b32 s{sT1}, s{sWAVE}, 10")
    I(f"s_add_u32 s{sT1}, s{sT1}, {XI}")
    I(f"v_add_u32 v{vT}, s{sT1}, v{vT}")
    I(f"v_lshrrev_b32 v{vT+1}, 2, v{vLANE}")
    I(f"v_and_b32 v{vT+2}, 6, v{vT+1}")
    I(f"v_bfe_u32 v{vT+3}, v{vLANE}, 1, 1")
    I(f"v_xor_b32 v{vT+2}, v{vT+2}, v{vT+3}")
    I(f"v_lshlrev_b32 v{vT+2}, 4, v{vT+2}")
    I(f"v_lshl_or_b32 v{vT+2}, v{vT+1}, 7, v{vT+2}")
    I(f"v_and_b32 v{vT+3}, 1, v{vLANE}")
    I(f"v_lshl_or_b32 v{vT+2}, v{vT+3}, 3, v{vT+2}")
    I(f"s_add_u32 s{sT1}, s{sLDSW}, 16384")
    I(f"v_add_u32 v{vT+8}, s{sT1}, v{vT+2}")
    for ct in range(1, 4):
        I(f"v_xor_b32 v{vT+8+ct}, {ct << 5}, v{vT+8}")
    for s_ in range(4):
        I(f"ds_read_b64 v[{vA+4*s_}:{vA+4*s_+1}], v{vT} offset:{s_*64}")
        I(f"ds_read_b64 v[{vA+4*s_+2}:{vA+4*s_+3}], v{vT} offset:{s_*64+32}")
    def b_reads(s_):
        for ct in range(4):
            d = vB + 16*s_ + 4*ct
            I(f"ds_read_b64_tr_b16 v[{d}:{d+1}], v{vT+8+ct} offset:{s_*4096}")
            I(f"ds_read_b64_tr_b16 v[{d+2}:{d+3}], v{vT+8+ct} offset:{s_*4096+2048}")
    I("s_waitcnt lgkmcnt(7)")
    b_reads(0)
    for s_ in range(4):
        if s_ < 3:
            I("s_waitcnt lgkmcnt(7)")
            b_reads(s_ + 1)
            I("s_waitcnt lgkmcnt(8)")
        else:
            I("s_waitcnt lgkmcnt(0)")
        for ct in range(4):
            d = vB + 16*s_ + 4*ct
            c = "0" if s_ == 0 else f"v[{vC+4*ct}:{vC+4*ct+3}]"
            I(f"v_mfma_f32_16x16x32_bf16 v[{vC+4*ct}:{vC+4*ct+3}], v[{vA+4*s_}:{vA+4*s_+3}], v[{d}:{d+3}], {c}")
    for ct, (lo, hi) in ((1, ("0xffff0000", "0")), (2, ("0", "0xffff")), (3, ("0", "0xffff0000"))):
        I(f"s_mov_b32 exec_lo, {lo}")
        I(f"s_mov_b32 exec_hi, {hi}")
        for r in range(4):
            I(f"v_mov_b32 v{vC+r}, v{vC+4*ct+r}")
    I("s_mov_b64 exec, -1")
    I(f"s_lshl_b32 s{sT1}, s{sWAVE}, 10")
    I(f"s_add_u32 s{sT1}, s{sT1}, {RT}")
    I(f"v_lshlrev_b32 v{vT+2}, 2, v{vLANE}")
    I(f"v_add_u32 v{vT+3}, s{sT1}, v{vT+2}")
    for r in range(4):
        I(f"ds_write_b32 v{vT+3}, v{vC+r} offset:{r*256}")
    I(f"s_lshl_b32 s{sT1}, s{sWAVE}, 8")
    I(f"s_add_u32 s{sT1}, s{sT1}, {RT}")
    I(f"v_add_u32 v{vT+3}, s{sT1}, v{vT+2}")
    I(f"s_mul_i32 s{sT1}, s{sWAVE}, s{sBSTR}")
    I(f"s_add_u32 s{sT1}, s{sT1}, s{sOUTB}")
    I(f"v_add_u32 v{vT+2}, s{sT1}, v{vT+2}")
    I(f"v_mov_b32 v{vT+13}, s{sTAG}")
    I("s_waitcnt lgkmcnt(0)")
    I("s_barrier")
    for w in range(4):
        I(f"ds_read_b32 v{vC+w}, v{vT+3} offset:{w*1024}")
    I("s_waitcnt lgkmcnt(0)")
    I(f"v_add_f32 v{vC}, v{vC}, v{vC+1}")
    I(f"v_add_f32 v{vC+2}, v{vC+2}, v{vC+3}")
    I(f"v_add_f32 v{vC}, v{vC}, v{vC+2}")
    I(f"v_max_f32 v{vC}, s{sLO}, v{vC}")
    I(f"v_mov_b32_dpp v{vC+1}, v{vC} quad_perm:[1,0,3,2] row_mask:0xf bank_mask:0xf")
    I(f"v_cvt_pk_bf16_f32 v{vT+12}, v{vC}, v{vC+1}")
    I("s_mov_b32 exec_lo, 0x55555555")
    I("s_mov_b32 exec_hi, 0x55555555")
    I(f"global_store_dwordx2 v{vT+2}, v[{vT+12}:{vT+13}], s[{sWS}:{sWS+1}] sc1")
    I("s_mov_b64 exec, -1")
    G.L("L_taskEnd")
    I(f"s_cmp_eq_u32 s{sWAVE}, 2")
    I("s_cbranch_scc0 L_roleEnd")
    xa, ga = vGX, vGX + 4
    I(f"v_mov_b32 v{vT}, 0")
    for j in range(4):
        I(f"v_lshlrev_b32 v{vT+1}, 16, v{xa+j}")
        I(f"v_lshlrev_b32 v{vT+2}, 16, v{ga+j}")
        I(f"v_and_b32 v{vT+3}, 0xffff0000, v{xa+j}")
        I(f"v_and_b32 v{vT+8}, 0xffff0000, v{ga+j}")
        I(f"v_fmac_f32 v{vT}, v{vT+1}, v{vT+2}")
        I(f"v_fmac_f32 v{vT}, v{vT+3}, v{vT+8}")
    for ror in (8, 4, 2, 1):
        I(f"v_add_f32_dpp v{vT}, v{vT}, v{vT} row_ror:{ror} row_mask:0xf bank_mask:0xf")
    xsum(vT, vT+1)
    I(f"v_mul_f32 v{vT}, {f32(-math.log2(math.e))}, v{vT}")
    I(f"v_exp_f32 v{vT}, v{vT}")
    I(f"v_add_f32 v{vT}, 1.0, v{vT}")
    I(f"v_rcp_f32 v{vT}, v{vT}")
    I(f"v_mov_b32 v{vT+1}, {M_G}")
    I(f"ds_write_b32 v{vT+1}, v{vT}")
    G.L("L_roleEnd")
    stamp(1)
    G.vm_bound = 8*kfirst + vrole + 1
    for t in range(kfirst, 4): k_tile(t)
    v_loads(vpre)
    I(f"s_lshl_b32 s{sT0}, s{sHKV}, 2")
    I(f"s_add_u32 s{sT0}, s{sT0}, s{sB}")
    I(f"s_lshl_b32 s{sT0}, s{sT0}, 11")
    I(f"s_lshl_b32 s{sT1}, s{sWAVE}, 9")
    I(f"s_add_u32 s{sT0}, s{sT0}, s{sT1}")
    I(f"v_lshlrev_b32 v{vA0}, 3, v{vLANE}")
    I(f"v_add_u32 v{vA0}, s{sT0}, v{vA0}")
    vq = vS
    qload = f"global_load_dwordx2 v[{vq}:{vq+1}], v{vA0}, s[{sWS}:{sWS+1}] sc1"
    G.window(Wc[0])
    stamp(11)
    qg = vm(qload)
    v_loads(cover)
    I(f"s_lshl_b32 s{sT1}, s{sWAVE}, 8")
    I(f"s_add_u32 s{sT1}, s{sT1}, {QI}")
    I(f"v_lshlrev_b32 v{vT}, 2, v{vLANE}")
    I(f"v_add_u32 v{vT}, s{sT1}, v{vT}")
    I(f"v_and_b32 v{vT+1}, 1, v{vLANE}")
    I(f"v_lshlrev_b32 v{vT+1}, 9, v{vT+1}")
    I(f"v_lshl_add_u32 v{vT+1}, v{vG_}, 4, v{vT+1}")
    I(f"v_add_u32 v{vT+1}, {QI}, v{vT+1}")
    G.vm_wait(qg)
    poll("q", lambda: I(qload), lambda: tagcheck([vq+1]))
    stamp(2)
    if W2 and wswitch == 'q': Wc[0] = W2
    I(f"ds_write_b32 v{vT}, v{vq}")
    I("s_waitcnt lgkmcnt(0)")
    if not nobar: I("s_barrier")
    for s_ in range(8):
        I(f"ds_read_b128 a[{aQ+4*s_}:{aQ+4*s_+3}], v{vT+1} offset:{s_*64}")
    def k_reads(t):
        if noqk: return
        for s in range(8):
            d = aKT + 32*(t & 1) + 4*s
            I(f"ds_read_b128 a[{d}:{d+3}], v{vKA + (s & 3)} offset:{slot(t)*8192 + (s >> 2)*256}")
    def qk_mfma(t):
        if noqk: return
        for s in range(8):
            d = aKT + 32*(t & 1) + 4*s
            c = "0" if s == 0 else f"v[{vS+4*t}:{vS+4*t+3}]"
            I(f"v_mfma_f32_16x16x32_bf16 v[{vS+4*t}:{vS+4*t+3}], a[{d}:{d+3}], a[{aQ+4*s}:{aQ+4*s+3}], {c}")
    vWD = vA0
    I(f"v_lshrrev_b32 v{vT+6}, 3, v{vLANE}")
    I(f"v_and_b32 v{vT+7}, 6, v{vT+6}")
    I(f"v_and_b32 v{vT+12}, 7, v{vLANE}")
    I(f"v_xor_b32 v{vT+7}, v{vT+7}, v{vT+12}")
    I(f"v_lshlrev_b32 v{vT+7}, 4, v{vT+7}")
    I(f"v_mul_u32_u24 v{vT+6}, 896, v{vT+6}")
    I(f"v_add_u32 v{vWD}, v{vT+6}, v{vT+7}")
    sWA, sWB_, sWC = sSTR, sSTG, sBSTR
    I(f"s_lshl_b32 s{sWA}, s{sHKV}, 9")
    I(f"s_lshl_b32 s{sT1}, s{sWAVE}, 7")
    I(f"s_add_u32 s{sWA}, s{sWA}, s{sT1}")
    I(f"s_mul_i32 s{sWA}, s{sWA}, 896")
    I(f"s_lshl_b32 s{sT1}, s{sC}, 7")
    I(f"s_add_u32 s{sWA}, s{sWA}, s{sT1}")
    I(f"s_mul_i32 s{sWB_}, s{sHKV}, 224")
    I(f"s_mul_i32 s{sT2}, s{sWAVE}, 56")
    I(f"s_add_u32 s{sWB_}, s{sWB_}, s{sT2}")
    I(f"s_mul_i32 s{sWB_}, s{sWB_}, 896")
    I(f"s_add_u32 s{sWB_}, s{sWB_}, s{sT1}")
    I(f"s_mul_i32 s{sWC}, s{sWAVE}, {7*1024}")
    I(f"s_add_u32 s{sWC}, s{sWC}, {W2I}")
    wnext = [0]; wl = [G.vm_n - 1]
    def w_loads(n):
        for _ in range(min(n, 23 - wnext[0])):
            i = wnext[0]; wnext[0] += 1
            if skip_w: continue
            if i < 16:
                I(f"s_add_u32 m0, s{sLDSW}, {16384 + i*1024}")
                if i: I(f"s_add_u32 s{sWA}, s{sWA}, {8*896}")
                G.window(Wc[0])
                wl[0] = vm(f"buffer_load_dwordx4 v{vWD}, s[{rWO}:{rWO+3}], s{sWA} offen {wf} lds")
            else:
                k = i - 16
                I(f"s_add_u32 m0, s{sWC}, {k*1024}")
                if k: I(f"s_add_u32 s{sWB_}, s{sWB_}, {8*896}")
                G.window(Wc[0])
                wl[0] = vm(f"buffer_load_dwordx4 v{vWD}, s[{rW2}:{rW2+3}], s{sWB_} offen {wf} lds")
    def mix(nw, nv):
        while nw > 0 or nv > 0:
            k = min(nw, 1); w_loads(k); nw -= k
            k = min(nv, 1); v_loads(k); nv -= k
    I("s_waitcnt lgkmcnt(0)")
    k_reads(0)
    for t in range(4):
        I("s_waitcnt lgkmcnt(0)")
        if t < 3: k_reads(t + 1)
        if t < 2: k_tile(t + 4)
        qk_mfma(t)
    mix(8, fill1)
    G.vm_wait(kidx[4])
    k_reads(4)
    I("s_waitcnt lgkmcnt(0)")
    G.vm_wait(kidx[5])
    k_reads(5)
    k_tile(6)
    qk_mfma(4)
    I("s_waitcnt lgkmcnt(0)")
    k_tile(7)
    qk_mfma(5)
    mix(8, fill2)
    vH, vHA = vT + 12, vT + 14
    I(f"s_mul_i32 s{sT0}, s{sB}, 896")
    I(f"s_mul_i32 s{sT1}, s{sHKV}, 112")
    I(f"s_add_u32 s{sT0}, s{sT0}, s{sT1}")
    I(f"s_mul_i32 s{sT1}, s{sWAVE}, 28")
    I(f"s_add_u32 s{sT0}, s{sT0}, s{sT1}")
    I(f"s_lshl_b32 s{sT0}, s{sT0}, 3")
    I(f"s_add_u32 s{sT0}, s{sT0}, {HOFF}")
    I(f"v_min_u32 v{vHA}, 27, v{vLANE}")
    I(f"v_lshlrev_b32 v{vHA}, 3, v{vHA}")
    I(f"v_add_u32 v{vHA}, s{sT0}, v{vHA}")
    hload = f"global_load_dwordx2 v[{vH}:{vH+1}], v{vHA}, s[{sWS}:{sWS+1}] sc1"
    hg = vm(hload)
    G.vm_wait(kidx[6])
    k_reads(6)
    I("s_waitcnt lgkmcnt(0)")
    G.vm_wait(kidx[7])
    k_reads(7)
    qk_mfma(6)
    I("s_waitcnt lgkmcnt(0)")
    qk_mfma(7)
    stamp(3)
    if W3: Wc[0] = W3
    mix(4, 4)
    stamp(12)
    vM, vL = vT, vT + 1
    I(f"v_max3_f32 v{vM}, v{vS}, v{vS+1}, v{vS+2}")
    for k in range(3, 31, 2):
        I(f"v_max3_f32 v{vM}, v{vM}, v{vS+k}, v{vS+k+1}")
    I(f"v_max_f32 v{vM}, v{vM}, v{vS+31}")
    xsum(vM, vT+6, "v_max_f32")
    I(f"v_mul_f32 v{vM}, s{sSC}, v{vM}")
    for k in range(0 if nosm else 32):
        I(f"v_fma_f32 v{vS+k}, v{vS+k}, s{sSC}, -v{vM}")
    for k in range(0 if nosm else 32):
        I(f"v_exp_f32 v{vS+k}, v{vS+k}")
    I(f"v_add_f32 v{vL}, v{vS}, v{vS+1}")
    for k in range(2, 32):
        I(f"v_add_f32 v{vL}, v{vL}, v{vS+k}")
    for k in range(16):
        I(f"v_cvt_pk_bf16_f32 v{vP+k}, v{vS+2*k}, v{vS+2*k+1}")
    xsum(vL, vT+6)
    I(f"v_and_b32 v{vT+2}, 1, v{vLANE}")
    I(f"v_lshlrev_b32 v{vT+2}, 4, v{vT+2}")
    I(f"v_add_u32 v{vT+2}, {MISC}, v{vT+2}")
    I(f"s_lshl_b32 s{sT1}, s{sWAVE}, 2")
    I(f"v_add_u32 v{vT+3}, s{sT1}, v{vT+2}")
    I(f"ds_write_b32 v{vT+3}, v{vM} offset:{M_MX - MISC}")
    I(f"ds_write_b32 v{vT+3}, v{vL} offset:{M_LS - MISC}")
    I(f"v_lshlrev_b32 v{tRW}, 3, v{vN_}")
    I(f"v_add_u32 v{tRW}, s{sLDSW}, v{tRW}")
    I(f"v_lshlrev_b32 v{vT+6}, 3, v0")
    I(f"v_mov_b32 v{tRR}, v{vT+6}")
    I(f"v_add_u32 v{tRR2}, 65536, v{vT+6}")
    I(f"s_lshl_b32 s{sT0}, s2, 11")
    I(f"s_add_u32 s{sT0}, s{sT0}, {ODOFF}")
    I(f"v_add_u32 v{tOD}, s{sT0}, v{vT+6}")
    I(f"s_lshl_b32 s{sT0}, s{sGRP}, 14")
    I(f"s_add_u32 s{sT0}, s{sT0}, {ODOFF + 0x1000}")
    I(f"v_add_u32 v{tG1}, s{sT0}, v{vT+6}")
    I(f"v_add_u32 v{tG2}, 0x2000, v{tG1}")
    I(f"s_lshl_b32 s{sT0}, s{sGRP}, 8")
    I(f"s_add_u32 s{sT0}, s{sT0}, {OSOFF}")
    I(f"v_and_b32 v{vT+6}, 31, v{vLANE}")
    I(f"v_lshlrev_b32 v{vT+6}, 3, v{vT+6}")
    I(f"v_add_u32 v{tGS}, s{sT0}, v{vT+6}")
    I(f"v_lshrrev_b32 v{vT+6}, 4, v0")
    I(f"v_and_b32 v{vT+7}, 7, v{vT+6}")
    I(f"v_lshrrev_b32 v{vT+6}, 3, v{vT+6}")
    I(f"v_lshl_add_u32 v{vT+7}, v{vT+6}, 7, v{vT+7}")
    I(f"v_lshl_add_u32 v{vT+7}, v{vN_}, 3, v{vT+7}")
    img_pos(tOI, vT+7, vT+6)
    I(f"v_add_u32 v{tOI}, {OI}, v{tOI}")
    I(f"s_lshl_b32 s{sT0}, s{sB}, 3")
    I(f"s_add_u32 s{sT0}, s{sT0}, s{sC}")
    I(f"s_lshl_b32 s{sT0}, s{sT0}, 12")
    I(f"s_lshl_b32 s{sT1}, s{sWAVE}, 7")
    I(f"s_add_u32 s{sT0}, s{sT0}, s{sT1}")
    I(f"s_add_u32 s{sT0}, s{sT0}, {YOFF}")
    I(f"v_lshlrev_b32 v{vT+6}, 3, v{vN_}")
    I(f"v_add_u32 v{vT+6}, s{sT0}, v{vT+6}")
    I(f"s_lshl_b32 s{sT1}, s{sHKV}, 9")
    I(f"v_add_u32 v{tYS}, s{sT1}, v{vT+6}")
    I(f"v_lshl_add_u32 v{tYG}, v{vG_}, 9, v{vT+6}")
    I(f"v_lshlrev_b32 v{tOUT}, 1, v{vN_}")
    I(f"v_mov_b32 v{tPO+1}, s{sTAG}")
    I(f"v_mov_b32 v{tPY+1}, s{sTAG}")
    I(f"s_mul_i32 s{sOUTS}, s{sB}, 896")
    I(f"s_lshl_b32 s{sT1}, s{sC}, 7")
    I(f"s_add_u32 s{sOUTS}, s{sOUTS}, s{sT1}")
    I(f"s_lshl_b32 s{sT1}, s{sWAVE}, 5")
    I(f"s_add_u32 s{sOUTS}, s{sOUTS}, s{sT1}")
    def pv(beta, h):
        j0 = beta*16 + h*8
        G.vm_wait(vidx[j0 + 7])
        if nopv: return
        for c4 in range(4):
            src = []
            for q in range(8):
                f, b0 = v_reg(j0 + q)
                if f == "a":
                    t = vRD + 8*(c4 & 1) + q
                    I(f"v_accvgpr_read_b32 v{t}, a{b0 + c4}")
                    src.append(t)
                else:
                    src.append(b0 + c4)
            for e, sel in ((0, sSELLO), (1, sSELHI)):
                pt = vPT + 8*(c4 & 1) + 4*e
                for i in range(4):
                    I(f"v_perm_b32 v{pt+i}, v{src[2*i+1]}, v{src[2*i]}, s{sel}")
            for e in (0, 1):
                pt = vPT + 8*(c4 & 1) + 4*e
                acc = aACC + 4*(h*8 + 2*c4 + e)
                c = "0" if beta == 0 else f"a[{acc}:{acc+3}]"
                I(f"v_mfma_f32_16x16x32_bf16 a[{acc}:{acc+3}], v[{vP+4*beta}:{vP+4*beta+3}], v[{pt}:{pt+3}], {c}")
    mix(3, vpost[0])
    assert skip_w or wnext[0] == 23
    pv(0, 0); v_loads(vpost[1]); pv(0, 1); v_loads(vpost[2])
    G.vm_wait(hg)
    I("s_mov_b64 exec, 0xfffffff")
    poll("h", lambda: I(hload), lambda: tagcheck([vH+1]))
    I(f"s_mul_i32 s{sT1}, s{sWAVE}, 56")
    I(f"v_lshlrev_b32 v{vT+6}, 1, v{vLANE}")
    I(f"v_add_u32 v{vT+6}, s{sT1}, v{vT+6}")
    img_pos(vT+7, vT+6, vT+8)
    I(f"v_add_u32 v{vT+7}, {HI}, v{vT+7}")
    I(f"ds_write_b32 v{vT+7}, v{vH}")
    I("s_mov_b64 exec, -1")
    pv(1, 0); v_loads(vpost[3]); pv(1, 1); v_loads(vpost[4])
    stamp(13)
    wlast = wl[0]
    vWB = vT + 9
    I(f"v_lshrrev_b32 v{vT+6}, 2, v{vLANE}")
    I(f"v_and_b32 v{vT+7}, 6, v{vT+6}")
    I(f"v_bfe_u32 v{vT+8}, v{vLANE}, 1, 1")
    I(f"s_lshl_b32 s{sT1}, s{sWAVE}, 1")
    I(f"v_or_b32 v{vT+8}, s{sT1}, v{vT+8}")
    I(f"v_xor_b32 v{vT+7}, v{vT+7}, v{vT+8}")
    I(f"v_lshlrev_b32 v{vT+7}, 4, v{vT+7}")
    I(f"v_lshl_or_b32 v{vT+7}, v{vT+6}, 7, v{vT+7}")
    I(f"v_and_b32 v{vT+8}, 1, v{vLANE}")
    I(f"v_lshl_or_b32 v{vWB}, v{vT+8}, 3, v{vT+7}")
    I(f"v_add_u32 v{vWB+1}, 65536, v{vWB}")
    I(f"v_lshlrev_b32 v{vWB+2}, 4, v{vG_}")
    I(f"v_add_u32 v{vWB+2}, {OI}, v{vWB+2}")
    I(f"v_add_u32 v{vWB+3}, {W2I}, v{vWB}")
    G.vm_wait(wlast)
    I("s_waitcnt lgkmcnt(0)")
    stamp(14)
    if not nobar: I("s_barrier")
    stamp(15)
    vR = vRD
    I(f"ds_read_b128 v[{vR}:{vR+3}], v{vT+2} offset:{M_MX - MISC}")
    I(f"ds_read_b128 v[{vR+4}:{vR+7}], v{vT+2} offset:{M_LS - MISC}")
    I(f"v_mov_b32 v{vT+6}, {M_G}")
    I(f"ds_read_b32 v{vT+6}, v{vT+6}")
    def wo_at(s):
        owner, k = divmod(s, 4)
        return (vWB + (owner >> 1), (owner & 1)*32768 + 16384 + k*4096)
    def w2_at(s):
        return (vWB + 3, s*4096)
    for s in range(6):
        a, o = w2_at(s)
        I(f"ds_read_b64_tr_b16 a[{aW2+4*s}:{aW2+4*s+1}], v{a} offset:{o}")
        I(f"ds_read_b64_tr_b16 a[{aW2+4*s+2}:{aW2+4*s+3}], v{a} offset:{o+2048}")
    I("s_waitcnt lgkmcnt(12)")
    I(f"v_readfirstlane_b32 s{sG}, v{vT+6}")
    I(f"v_max3_f32 v{vM}, v{vR}, v{vR+1}, v{vR+2}")
    I(f"v_max_f32 v{vM}, v{vM}, v{vR+3}")
    for w in range(4):
        I(f"v_sub_f32 v{vR+w}, v{vR+w}, v{vM}")
    for w in range(4):
        I(f"v_exp_f32 v{vR+w}, v{vR+w}")
    I(f"v_mul_f32 v{vL}, v{vR}, v{vR+4}")
    for w in range(1, 4):
        I(f"v_fmac_f32 v{vL}, v{vR+w}, v{vR+4+w}")
    for w in range(4):
        for h in range(2):
            I(f"v_readlane_b32 s{sF+2*w+h}, v{vR+w}, {h}")
    I(f"v_and_b32 v{vT+6}, 2, v{vLANE}")
    I(f"v_cmp_eq_u32 vcc, 0, v{vT+6}")
    I(f"v_cndmask_b32 v{vR+8}, v{vL}, v{vM}, vcc")
    I(f"v_mov_b32 v{vR+9}, s{sTAG}")
    I(f"s_lshl_b32 s{sT1}, s2, 5")
    I(f"s_add_u32 s{sT1}, s{sT1}, {OSOFF}")
    I(f"v_lshlrev_b32 v{vT+6}, 3, v{vLANE}")
    I(f"v_add_u32 v{vT+6}, s{sT1}, v{vT+6}")
    I(f"s_cmp_eq_u32 s{sWAVE}, 0")
    I("s_cbranch_scc0 L_nostat")
    I("s_mov_b64 exec, 0xf")
    I(f"global_store_dwordx2 v{vT+6}, v[{vR+8}:{vR+9}], s[{sWS}:{sWS+1}] sc1")
    I("s_mov_b64 exec, -1")
    G.L("L_nostat")
    G.vm_bound += 1
    s = 6
    a, o = w2_at(s)
    I(f"ds_read_b64_tr_b16 a[{aW2+4*s}:{aW2+4*s+1}], v{a} offset:{o}")
    I(f"ds_read_b64_tr_b16 a[{aW2+4*s+2}:{aW2+4*s+3}], v{a} offset:{o+2048}")
    vYB, vYA = vT + 12, vT + 4
    I("s_waitcnt lgkmcnt(0)")
    for s in range(7):
        I(f"ds_read_b128 v[{vR+4*(s%4)}:{vR+4*(s%4)+3}], v{vWB+2} offset:{HI - OI + s*64}")
        if s % 4 == 3 or s == 6:
            I("s_waitcnt lgkmcnt(0)")
            for s2 in range(s - (s % 4), s + 1):
                c = "0" if s2 == 0 else f"v[{vYB}:{vYB+3}]"
                I(f"v_mfma_f32_16x16x32_bf16 v[{vYB}:{vYB+3}], v[{vR+4*(s2%4)}:{vR+4*(s2%4)+3}], a[{aW2+4*s2}:{aW2+4*s2+3}], {c}")
    for quarter in range(4):
        for s in range(4*quarter, 4*quarter + 4):
            a, o = wo_at(s)
            I(f"ds_read_b64_tr_b16 a[{aWO+4*s}:{aWO+4*s+1}], v{a} offset:{o}")
            I(f"ds_read_b64_tr_b16 a[{aWO+4*s+2}:{aWO+4*s+3}], v{a} offset:{o+2048}")
        I("s_waitcnt lgkmcnt(0)")
    v_loads(64)
    stamp(4)
    def red_writes(lo):
        I("s_mov_b64 exec, 0xffff")
        for i in range(lo, lo + 8):
            I(f"ds_write_b64 v{tRW}, a[{aACC+4*i}:{aACC+4*i+1}] offset:{i*128}")
        I("s_mov_b64 exec, -1")
    pv(2, 0); pv(2, 1); pv(3, 0)
    red_writes(0)
    pv(3, 1)
    stamp(5)
    red_writes(8)
    I("s_waitcnt lgkmcnt(0)")
    I("s_barrier")
    vR = vRING
    for w in range(4):
        I(f"ds_read_b64 v[{vR+2*w}:{vR+2*w+1}], v{tRR if w < 2 else tRR2} offset:{(w & 1)*32768}")
    for w in range(4):
        I(f"s_waitcnt lgkmcnt({3-w})")
        for h in range(2):
            if w == 0: I(f"v_mul_f32 v{vR+8+h}, s{sF+h}, v{vR+h}")
            else: I(f"v_fmac_f32 v{vR+8+h}, s{sF+2*w+h}, v{vR+2*w+h}")
    I(f"v_cvt_pk_bf16_f32 v{tPO}, v{vR+8}, v{vR+9}")
    I(f"global_store_dwordx2 v{tOD}, v[{tPO}:{tPO+1}], s[{sWS}:{sWS+1}] sc1")
    stamp(6)
    I(f"s_cmp_eq_u32 s{sC}, 7")
    I("s_cbranch_scc1 L_fin")
    vO = vRING + 16
    vSt = vRING + 32
    def s_load():
        I(f"global_load_dwordx2 v[{vSt}:{vSt+1}], v{tGS}, s[{sWS}:{sWS+1}] sc1")
    def o_loads():
        for k in range(8):
            a = tG1 if k < 4 else tG2
            I(f"global_load_dwordx2 v[{vO+2*k}:{vO+2*k+1}], v{a}, s[{sWS}:{sWS+1}] offset:{(k & 3)*2048 - 4096} sc1")
    s_load()
    o_loads()
    I("s_waitcnt vmcnt(8)")
    poll("s", s_load, lambda: tagcheck([vSt+1]))
    vW0 = vSt + 2
    I(f"v_mov_b32_dpp v{vW0}, v{vSt} row_shr:2 row_mask:0xf bank_mask:0xf")
    I(f"v_mov_b32 v{vW0+1}, v{vW0}")
    for ror in (4, 8):
        I(f"v_max_f32_dpp v{vW0+1}, v{vW0+1}, v{vW0+1} row_ror:{ror} row_mask:0xf bank_mask:0xf")
    I(f"v_mov_b32 v{vW0+2}, v{vW0+1}")
    I(f"v_permlane16_swap_b32 v{vW0+1}, v{vW0+2}")
    I(f"v_max_f32 v{vW0+1}, v{vW0+1}, v{vW0+2}")
    I(f"v_sub_f32 v{vW0}, v{vW0}, v{vW0+1}")
    I(f"v_exp_f32 v{vW0}, v{vW0}")
    I(f"v_mul_f32 v{vW0+1}, v{vW0}, v{vSt}")
    for ror in (4, 8):
        I(f"v_add_f32_dpp v{vW0+1}, v{vW0+1}, v{vW0+1} row_ror:{ror} row_mask:0xf bank_mask:0xf")
    I(f"v_mov_b32 v{vW0+2}, v{vW0+1}")
    I(f"v_permlane16_swap_b32 v{vW0+1}, v{vW0+2}")
    I(f"v_add_f32 v{vW0+1}, v{vW0+1}, v{vW0+2}")
    I(f"v_rcp_f32 v{vW0+1}, v{vW0+1}")
    I(f"v_mul_f32 v{vW0}, v{vW0}, v{vW0+1}")
    for k in range(8):
        for h in range(2):
            I(f"v_readlane_b32 s{sWT+2*k+h}, v{vW0}, {4*k+2+h}")
    I("s_waitcnt vmcnt(0)")
    stamp(16)
    poll("o", o_loads, lambda: tagcheck([vO+2*k+1 for k in range(8)]))
    stamp(17)
    vo0, vo1 = vW0+3, vW0+4
    for k in range(8):
        I(f"v_lshlrev_b32 v{vW0+5}, 16, v{vO+2*k}")
        I(f"v_and_b32 v{vW0+6}, 0xffff0000, v{vO+2*k}")
        if k == 0:
            I(f"v_mul_f32 v{vo0}, s{sWT}, v{vW0+5}")
            I(f"v_mul_f32 v{vo1}, s{sWT+1}, v{vW0+6}")
        else:
            I(f"v_fmac_f32 v{vo0}, s{sWT+2*k}, v{vW0+5}")
            I(f"v_fmac_f32 v{vo1}, s{sWT+2*k+1}, v{vW0+6}")
    I(f"v_cvt_pk_bf16_f32 v{vo0}, v{vo0}, v{vo1}")
    I(f"ds_write_b16 v{tOI}, v{vo0}")
    I(f"ds_write_b16_d16_hi v{tOI}, v{vo0} offset:512")
    I("s_waitcnt lgkmcnt(0)")
    I("s_barrier")
    vOA = vRING + 64
    for s in range(16):
        I(f"ds_read_b128 v[{vOA+4*s}:{vOA+4*s+3}], v{vWB+2} offset:{s*64}")
        if s == 11: I("s_waitcnt lgkmcnt(4)")
    for s in range(16):
        if s == 8: I("s_waitcnt lgkmcnt(0)")
        c = "0" if s == 0 else f"v[{vYA}:{vYA+3}]"
        I(f"v_mfma_f32_16x16x32_bf16 v[{vYA}:{vYA+3}], v[{vOA+4*s}:{vOA+4*s+3}], a[{aWO+4*s}:{aWO+4*s+3}], {c}")
    I(f"v_sub_f32 v{tPY}, v{vYA}, v{vYB}")
    I(f"v_fma_f32 v{tPY}, v{tPY}, s{sG}, v{vYB}")
    I("s_mov_b64 exec, 0xffff")
    I(f"global_store_dwordx2 v{tYS}, v[{tPY}:{tPY+1}], s[{sWS}:{sWS+1}] sc1")
    I("s_mov_b64 exec, -1")
    stamp(18)
    I(f"s_sub_u32 s{sT1}, 7, s{sB}")
    I(f"s_cmp_eq_u32 s{sS}, s{sT1}")
    I("s_cbranch_scc0 L_fin")
    vY = vO
    def y_loads():
        I(f"global_load_dwordx2 v[{vY}:{vY+1}], v{tYG}, s[{sWS}:{sWS+1}] sc1")
        I(f"global_load_dwordx2 v[{vY+2}:{vY+3}], v{tYG}, s[{sWS}:{sWS+1}] offset:2048 sc1")
    y_loads()
    I("s_waitcnt vmcnt(0)")
    poll("y", y_loads, lambda: tagcheck([vY+1, vY+3]))
    I(f"v_add_f32 v{vY}, v{vY}, v{vY+2}")
    xsum(vY, vY+1)
    I(f"v_cvt_pk_bf16_f32 v{vY}, v{vY}, v{vY}")
    I("s_mov_b64 exec, 0xffff")
    I(f"buffer_store_short v{vY}, v{tOUT}, s[{rOUT}:{rOUT+3}], s{sOUTS} offen")
    I("s_mov_b64 exec, -1")
    I("s_cmp_eq_u32 s2, 15")
    I("s_cbranch_scc0 L_fin")
    I(f"s_cmp_eq_u32 s{sWAVE}, 0")
    I("s_cbranch_scc0 L_fin")
    I(f"v_min_u32 v{vY+4}, 23, v{vLANE}")
    I(f"v_lshrrev_b32 v{vY+5}, 3, v{vY+4}")
    I(f"v_add_u32 v{vY+5}, 1, v{vY+5}")
    I(f"v_lshlrev_b32 v{vY+5}, 15, v{vY+5}")
    I(f"v_and_b32 v{vY+4}, 7, v{vY+4}")
    I(f"v_lshl_add_u32 v{vY+5}, v{vY+4}, 9, v{vY+5}")
    I(f"v_add_u32 v{vY+5}, {YOFF}, v{vY+5}")
    eload = f"global_load_dwordx2 v[{vY+6}:{vY+7}], v{vY+5}, s[{sWS}:{sWS+1}] sc1"
    I(eload)
    I("s_waitcnt vmcnt(0)")
    poll("e", lambda: I(eload), lambda: tagcheck([vY+7]))
    I(f"v_mov_b32 v{vY}, s{sTAG}")
    I(f"v_mov_b32 v{vY+1}, {EPOCH}")
    I("s_mov_b64 exec, 1")
    I(f"global_store_dword v{vY+1}, v{vY}, s[{sWS}:{sWS+1}] sc1")
    I("s_mov_b64 exec, -1")
    G.L("L_fin")
    if dbgstart:
        I("s_cmp_lt_u32 s2, 8")
        I("s_cbranch_scc0 L_end")
        I(f"s_cmp_eq_u32 s{sWAVE}, 0")
        I("s_cbranch_scc0 L_end")
        I(f"s_memrealtime s[{sSTAMP+2}:{sSTAMP+3}]")
        I("s_waitcnt lgkmcnt(0)")
        I("s_mov_b64 exec, 1")
        I(f"s_lshl_b32 s{sT0}, s2, 2")
        I(f"v_mov_b32 v{vT}, s{sT0}")
        I(f"v_mov_b32 v{vT+2}, s{sSTAMP}")
        I(f"global_store_dword v{vT}, v{vT+2}, s[{sDBG}:{sDBG+1}]")
        I(f"v_mov_b32 v{vT+2}, s{sSTAMP+2}")
        I(f"global_store_dword v{vT}, v{vT+2}, s[{sDBG}:{sDBG+1}] offset:32")
    if spin_to:
        I("s_cmp_eq_u32 s2, 15")
        I("s_cbranch_scc0 L_end")
        I(f"s_add_u32 s{sT1}, s{sSTAMP}, {spin_to}")
        G.L("L_sp")
        I(f"s_memrealtime s[{sP0}:{sP0+1}]")
        I("s_waitcnt lgkmcnt(0)")
        I(f"s_sub_u32 s{sT0}, s{sP0}, s{sT1}")
        I(f"s_cmp_lt_i32 s{sT0}, 0")
        I("s_cbranch_scc1 L_sp")
    if stamps:
        stamp(7)
        I(f"s_cmp_eq_u32 s{sWAVE}, {swave}")
        I("s_cbranch_scc0 L_end")
        I(f"s_mul_i32 s{sT0}, s2, 64")
        I(f"s_add_u32 s{sT0}, s{sT0}, {STAMP_OFF}")
        I(f"v_mov_b32 v{vT}, s{sT0}")
        I("s_mov_b64 exec, 1")
        for k in range(8):
            I(f"v_mov_b32 v{vT+2}, s{sSTAMP+2*k}")
            I(f"v_mov_b32 v{vT+3}, s{sSTAMP+2*k+1}")
            I(f"global_store_dwordx2 v{vT}, v[{vT+2}:{vT+3}], s[{sWS}:{sWS+1}] offset:{8*k}")
    G.L("L_end")
    I("s_endpgm")
    G.L("L_code_end")
    return G

HEADER = open("gated_mix__gqa_block_cached__dense_activation_relu__decode.s.ref").read().split("; Override launch")[0]

def emit(path, **kw):
    G = gen(**kw)
    for p in check_async(G.lines): print("ASYNC:", p)
    body, nn = G.text()
    src = HEADER + f"""; Override launch geometry by editing the next line (default: block=256,
; grid=ceil(out_elems/256), lds=0). Harness parses it; keep it on one line.
; @launch grid=(256,1,1) block=(256,1,1) lds={LDS_BYTES}
.amdgcn_target "amdgcn-amd-amdhsa--gfx950"
.text
.globl {NAME}
.p2align 8
.type {NAME},@function
{NAME}:
{body}
.section .rodata,"a"
.p2align 6
.amdhsa_kernel {NAME}
  .amdhsa_next_free_vgpr 512
  .amdhsa_next_free_sgpr 102
  .amdhsa_accum_offset 256
  .amdhsa_group_segment_fixed_size 0
  .amdhsa_kernarg_size 96
  .amdhsa_user_sgpr_count 2
  .amdhsa_user_sgpr_kernarg_segment_ptr 1
  .amdhsa_system_sgpr_workgroup_id_x 1
.end_amdhsa_kernel
"""
    open(path, "w").write(src)
    return nn

if __name__ == "__main__":
    out = sys.argv[1] if len(sys.argv) > 1 else "k.s"
    kw = eval("dict(" + (sys.argv[2] if len(sys.argv) > 2 else "") + ")")
    print("nops inserted:", emit(out, **kw))
```

```python
import sys, struct, math
from asmlib import Gen, check_async

NAME = "gated_mix__gqa_block_cached__dense_activation_relu__decode_kernel"

QOFF, HOFF, ODOFF, OSOFF, YOFF, EPOCH = 0x0, 0x10000, 0x60000, 0xE0000, 0x100000, 0xF8000
STAMP_OFF = 200 << 20
WOI, W2I = 131072, 147456
XI, RT = WOI, WOI + 4096
QI, OI, HI, MISC = 155648, 156672, 157696, 158208
M_G, M_MX, M_LS = MISC, MISC + 16, MISC + 64
LDS_BYTES = 163840
sX, sK, sV, sWQ, sWO, sBX, sW1, sW2, sGW, sOUT, sDBG, sWS = 4, 6, 8, 10, 12, 14, 16, 18, 20, 22, 24, 26
rK, rV, rW, rX, rWO, rW2, rOUT, rG = 28, 32, 36, 40, 44, 48, 56, 60
sOUTB, sBSTR, sLO, sTASK = 52, 53, 54, 55
sWAVE = 3
sGRP, sS, sB, sHKV, sC, sT0, sLDSW, sKV, sTAG, sSELLO, sSELHI, sSC = 64, 65, 66, 67, 68, 69, 70, 71, 72, 74, 75, 76
sSTR, sWA, sVB = 77, 78, 79
sSTAMP = 80
sP0, sP1, sT1, sT2 = 96, 98, 100, 101
sWT = 4
sG = 12
sF = 36
sOUTS, sWB_ = 52, 53
vLANE = 1
vTR = 0
vKD = 2
vKA = 10
vVO = 14
vA0 = 15
vT = 16
vG_, vN_ = 20, 21
vGX = 232
vS = 32
vTA = 32
vRD = 48
vPT = 64
vRING = 80
vP = 240
aACC, aQ, aKT, aV = 0, 64, 96, 160
aWO, aW2 = 64, 80
tRW, tRR, tRR2, tOD, tG1, tG2, tGS, tOI, tYS, tYG, tYG2, tOUT = range(vTA, vTA + 12)
tPO, tPY = vTA + 12, vTA + 14

def f32(x):
    return "0x%08x" % struct.unpack("<I", struct.pack("<f", x))[0]

def gen(trace=False, psleep=0, W=8, W2=None, stamps=False, code_pf=True, spin=100000, wf='nt', kfirst=2, vrole=0, winfirst=True,
        vpre=8, cover=8, vmid=12, vqk=(4, 4, 4), vpost=(2, 2, 2, 2), swave=0, spts=(1, 2, 3, 4, 5, 6, 7),
        nopoll=(), norole=False, skip_w=False, kearly=2, vearly=0, We=None, pretouch=0, pf_late=False, steer='odd', dbgwg=None):
    assert kfirst <= 2
    G = Gen()
    Wc = [W]
    I, vm = G.I, G.vm
    nst = [0]
    def stamp(pt):
        if stamps and pt in spts:
            k = nst[0]; nst[0] += 1
            assert k < 8
            I(f"s_memrealtime s[{sSTAMP+2*k}:{sSTAMP+2*k+1}]")
            I("s_waitcnt lgkmcnt(0)")
    trl = []
    def tr(label):
        if trace:
            k = len(trl); trl.append(label)
            assert k < 64
            I(f"s_memrealtime s[{sP1}:{sP1+1}]")
            I("s_waitcnt lgkmcnt(0)")
            I(f"v_writelane_b32 v{vTR}, s{sP1}, {k}")
    G.trl = trl
    sPAR = 62
    nlab = [0]; par_on = [False]
    def window():
        G.window(Wc[0])
        if We and par_on[0] and We < Wc[0]:
            nlab[0] += 1
            I(f"s_cbranch_vccnz L_w{nlab[0]}")
            I(f"s_waitcnt vmcnt({We-1})")
            G.L(f"L_w{nlab[0]}")
    def set_par():
        if We: I(f"s_mov_b64 vcc, s[{sPAR}:{sPAR+1}]")
    def srd(r, p, size):
        I(f"s_mov_b32 s{r}, s{p}")
        I(f"s_and_b32 s{r+1}, s{p+1}, 0xffff")
        I(f"s_mov_b32 s{r+2}, {size}")
        I(f"s_mov_b32 s{r+3}, 0x20000")
    def xsum(v, t, op="v_add_f32"):
        I(f"v_mov_b32 v{t}, v{v}")
        I(f"v_permlane16_swap_b32 v{v}, v{t}")
        I(f"{op} v{v}, v{v}, v{t}")
        I(f"v_mov_b32 v{t}, v{v}")
        I(f"v_permlane32_swap_b32 v{v}, v{t}")
        I(f"{op} v{v}, v{v}, v{t}")
    def poll(name, reload, check):
        if name in nopoll: return
        I(f"s_mov_b32 s{sT2}, 0")
        G.L(f"L_{name}_chk")
        check()
        I(f"s_cbranch_vccz L_{name}_ok")
        I(f"s_add_u32 s{sT2}, s{sT2}, 1")
        I(f"s_cmp_gt_u32 s{sT2}, {spin}")
        I(f"s_cbranch_scc1 L_{name}_ok")
        if psleep and name in ("o", "y", "s"): I(f"s_sleep {psleep}")
        reload()
        I("s_waitcnt vmcnt(0)")
        I(f"s_branch L_{name}_chk")
        G.L(f"L_{name}_ok")
    def tagcheck(regs):
        I(f"v_cmp_ne_u32 vcc, s{sTAG}, v{regs[0]}")
        for r in regs[1:]:
            I(f"v_cmp_ne_u32 s[{sP0}:{sP0+1}], s{sTAG}, v{r}")
            I(f"s_or_b64 vcc, vcc, s[{sP0}:{sP0+1}]")
    def img_pos(dst, row, t):
        I(f"v_lshrrev_b32 v{dst}, 5, v{row}")
        I(f"v_lshlrev_b32 v{dst}, 6, v{dst}")
        I(f"v_bfe_u32 v{t}, v{row}, 2, 2")
        I(f"v_lshl_add_u32 v{dst}, v{t}, 4, v{dst}")
        I(f"v_bfe_u32 v{t}, v{row}, 4, 1")
        I(f"v_lshl_add_u32 v{dst}, v{t}, 3, v{dst}")
        I(f"v_and_b32 v{t}, 3, v{row}")
        I(f"v_lshl_add_u32 v{dst}, v{t}, 1, v{dst}")
    def keep_group(base, stride):
        for k, (lo, hi) in ((1, ("0xffff0000", "0")), (2, ("0", "0xffff")), (3, ("0", "0xffff0000"))):
            I(f"s_mov_b32 exec_lo, {lo}")
            I(f"s_mov_b32 exec_hi, {hi}")
            for r in range(stride):
                I(f"v_mov_b32 v{base+r}, v{base+stride*k+r}")
        I("s_mov_b64 exec, -1")
    def wimg_src(dst, stride_sreg_or_imm, t0, t1):
        I(f"v_lshrrev_b32 v{t0}, 3, v{vLANE}")
        I(f"v_and_b32 v{t1}, 6, v{t0}")
        I(f"v_and_b32 v{dst}, 7, v{vLANE}")
        I(f"v_xor_b32 v{t1}, v{t1}, v{dst}")
        if isinstance(stride_sreg_or_imm, str): I(f"v_mul_lo_u32 v{t0}, v{t0}, {stride_sreg_or_imm}")
        else: I(f"v_mul_u32_u24 v{t0}, {stride_sreg_or_imm}, v{t0}")
        I(f"v_lshl_add_u32 v{dst}, v{t1}, 4, v{t0}")
    def wimg_rd(dst, t0, t1):
        I(f"v_lshrrev_b32 v{t0}, 2, v{vLANE}")
        I(f"v_and_b32 v{dst}, 6, v{t0}")
        I(f"v_bfe_u32 v{t1}, v{vLANE}, 1, 1")
        I(f"v_xor_b32 v{dst}, v{dst}, v{t1}")
        I(f"v_lshlrev_b32 v{dst}, 4, v{dst}")
        I(f"v_lshl_or_b32 v{dst}, v{t0}, 7, v{dst}")
        I(f"v_and_b32 v{t1}, 1, v{vLANE}")
        I(f"v_lshl_or_b32 v{dst}, v{t1}, 3, v{dst}")

    if stamps:
        I(f"s_memrealtime s[{sSTAMP}:{sSTAMP+1}]"); nst[0] = 1
        for k in range(1, 8): I(f"s_mov_b64 s[{sSTAMP+2*k}:{sSTAMP+2*k+1}], 0")
    I("s_cmp_ge_u32 s2, 256")
    I("s_cbranch_scc1 L_end")
    I("s_load_dwordx16 s[4:19], s[0:1], 0")
    I("s_load_dwordx8 s[20:27], s[0:1], 64")
    I(f"v_lshrrev_b32 v{vT}, 6, v0")
    I(f"v_and_b32 v{vLANE}, 63, v0")
    I(f"v_readfirstlane_b32 s{sWAVE}, v{vT}")
    if trace:
        I("s_waitcnt lgkmcnt(0)")
        I(f"v_mov_b32 v{vTR}, 0")
        tr("entry")
    def code_prefetch():
        if code_pf:
            I(f"s_cmp_eq_u32 s{sWAVE}, 3")
            I("s_cbranch_scc0 L_nopf")
            I(f"s_getpc_b64 s[{sP0}:{sP0+1}]")
            G.L("L_pc")
            I(f"s_sub_u32 s{sP0}, s{sP0}, L_pc-{NAME}")
            I(f"s_subb_u32 s{sP0+1}, s{sP0+1}, 0")
            I(f"v_lshlrev_b32 v{vT+1}, 7, v{vLANE}")
            for k in range(2):
                I(f"v_min_u32 v{vT+2}, L_code_end-{NAME}-4, v{vT+1}")
                I(f"global_load_dword v{vP+15}, v{vT+2}, s[{sP0}:{sP0+1}]")
                if k < 1: I(f"v_add_u32 v{vT+1}, 0x2000, v{vT+1}")
            G.L("L_nopf")
    if not pf_late: code_prefetch()
    I(f"s_lshr_b32 s{sGRP}, s2, 3")
    I(f"s_and_b32 s{sS}, s2, 7")
    I(f"s_lshr_b32 s{sB}, s{sGRP}, 3")
    I(f"s_and_b32 s{sHKV}, s{sGRP}, 7")
    I(f"s_add_u32 s{sC}, s{sS}, s{sHKV}")
    I(f"s_and_b32 s{sC}, s{sC}, 7")
    I(f"s_lshl_b32 s{sLDSW}, s{sWAVE}, 15")
    I(f"s_lshl_b32 s{sKV}, s{sGRP}, 21")
    I(f"s_lshl_b32 s{sT0}, s{sC}, 18")
    I(f"s_add_u32 s{sKV}, s{sKV}, s{sT0}")
    I(f"s_lshl_b32 s{sT0}, s{sWAVE}, 13")
    I(f"s_add_u32 s{sKV}, s{sKV}, s{sT0}")
    I(f"v_lshrrev_b32 v{vT}, 5, v{vLANE}")
    I(f"v_and_b32 v{vT+1}, 31, v{vLANE}")
    I(f"v_lshlrev_b32 v{vT+2}, 2, v{vT}")
    I(f"v_xor_b32 v{vT+1}, v{vT+1}, v{vT+2}")
    I(f"v_lshlrev_b32 v{vT+1}, 4, v{vT+1}")
    I(f"v_lshl_or_b32 v{vKD}, v{vT}, 9, v{vT+1}")
    for i in range(1, 8):
        I(f"v_xor_b32 v{vKD+i}, {(8*(i&1) + (i>>1)) << 4}, v{vKD}")
    I(f"v_lshrrev_b32 v{vG_}, 4, v{vLANE}")
    I(f"v_and_b32 v{vN_}, 15, v{vLANE}")
    I("s_waitcnt lgkmcnt(0)")
    srd(rK, sK, 0x4000000)
    kidx = {}
    def k_tile(t, win=True):
        tr(f"K{t}")
        I(f"s_add_u32 s{sT0}, s{sKV}, {t*32768}")
        for i in range(8):
            if i % 4 == 0:
                if i == 4: I(f"s_add_u32 s{sT0}, s{sT0}, 4096")
                I(f"s_add_u32 m0, s{sLDSW}, {(t & 3)*8192 + (i>>2)*4096}")
            if win: window()
            kidx[t] = vm(f"buffer_load_dwordx4 v{vKD+i}, s[{rK}:{rK+3}], s{sT0} offen offset:{(i&3)*1024} nt lds")
    vidx = {}
    def v_reg(j):
        return ("a", aV + 4*j) if j < 24 else ("v", vRING + 4*(j-24))
    vcur = [None]; vnext = [0]
    def v_loads(n, win=True):
        for _ in range(min(n, 64 - vnext[0])):
            j = vnext[0]; vnext[0] += 1
            if j % 4 == 0: tr(f"V{j}")
            beta, h, tp, r = j >> 4, (j >> 3) & 1, (j >> 2) & 1, j & 3
            base = (2*beta + tp)*32768 + (r >> 1)*4096
            if vcur[0] != base:
                I(f"s_add_u32 s{sVB}, s{sKV}, {base}")
                vcur[0] = base
            if win: window()
            f, b0 = v_reg(j)
            vidx[j] = vm(f"buffer_load_dwordx4 {f}[{b0}:{b0+3}], v{vVO}, s[{rV}:{rV+3}], s{sVB} offen offset:{(r&1)*2048 + h*256} nt")
    for t in range(kearly): k_tile(t, win=False)
    srd(rV, sV, 0x4000000)
    I(f"v_lshlrev_b32 v{vVO}, 9, v{vG_}")
    I(f"v_lshl_or_b32 v{vVO}, v{vN_}, 4, v{vVO}")
    v_loads(vearly, win=False)
    if pf_late: code_prefetch()
    I(f"s_load_dword s{sTAG}, s[{sWS}:{sWS+1}], {EPOCH}")
    I(f"s_mov_b32 s{sTASK}, 0")
    if norole: I("s_branch L_roleDone")
    I(f"s_and_b32 s{sT0}, s{sS}, 1")
    I(f"s_cmp_eq_u32 s{sT0}, 0")
    I("s_cbranch_scc0 L_gateLoads")
    I(f"s_lshl_b32 s{sT0}, s{sHKV}, 2")
    I(f"s_lshr_b32 s{sT1}, s{sS}, 1")
    I(f"s_add_u32 s{sT0}, s{sT0}, s{sT1}")
    I(f"s_cmp_lt_u32 s{sT0}, 23")
    I("s_cbranch_scc0 L_gateLoads")
    I(f"s_mul_i32 s{sT1}, s{sB}, 23")
    I(f"s_add_u32 s{sT0}, s{sT0}, s{sT1}")
    I(f"s_cmp_lt_u32 s{sT0}, 64")
    I("s_cbranch_scc1 L_roleQ")
    I(f"s_sub_u32 s{sT0}, s{sT0}, 64")
    I(f"s_lshl_b32 s{sT1}, s{sT0}, 7")
    I(f"s_add_u32 s{rW}, s{sW1}, s{sT1}")
    I(f"s_addc_u32 s{rW+1}, s{sW1+1}, 0")
    I(f"s_sub_u32 s{rW+2}, {448*3584}, s{sT1}")
    I(f"s_movk_i32 s{sSTR}, 3584")
    I(f"s_lshl_b32 s{sOUTB}, s{sT0}, 8")
    I(f"s_add_u32 s{sOUTB}, s{sOUTB}, {HOFF}")
    I(f"s_movk_i32 s{sBSTR}, 7168")
    I(f"s_mov_b32 s{sLO}, 0")
    I("s_branch L_taskLoads")
    G.L("L_roleQ")
    I(f"s_lshl_b32 s{sT1}, s{sT0}, 7")
    I(f"s_add_u32 s{rW}, s{sWQ}, s{sT1}")
    I(f"s_addc_u32 s{rW+1}, s{sWQ+1}, 0")
    I(f"s_sub_u32 s{rW+2}, {448*8192}, s{sT1}")
    I(f"s_movk_i32 s{sSTR}, 8192")
    I(f"s_lshr_b32 s{sT1}, s{sT0}, 3")
    I(f"s_lshl_b32 s{sOUTB}, s{sT1}, 13")
    I(f"s_and_b32 s{sT1}, s{sT0}, 7")
    I(f"s_lshl_b32 s{sT1}, s{sT1}, 8")
    I(f"s_add_u32 s{sOUTB}, s{sOUTB}, s{sT1}")
    I(f"s_movk_i32 s{sBSTR}, 2048")
    I(f"s_mov_b32 s{sLO}, 0xff800000")
    G.L("L_taskLoads")
    I(f"s_and_b32 s{rW+1}, s{rW+1}, 0xffff")
    I(f"s_mov_b32 s{rW+3}, 0x20000")
    srd(rX, sX, 3584)
    I(f"v_mul_u32_u24 v{vT}, 896, v{vG_}")
    I(f"v_lshl_add_u32 v{vT}, v{vN_}, 4, v{vT}")
    I(f"s_lshl_b32 s{sT0}, s{sWAVE}, 8")
    I(f"s_lshl_b32 s{sT1}, s{sWAVE}, 10")
    I(f"s_add_u32 m0, s{sT1}, {XI}")
    wimg_src(vT+1, f"s{sSTR}", vT+2, vT+3)
    I(f"buffer_load_dwordx4 v{vT}, s[{rX}:{rX+3}], s{sT0} offen {wf} lds")
    I(f"s_lshl_b32 s{sT1}, s{sSTR}, 3")
    I(f"s_lshl_b32 s{sT0}, s{sWAVE}, 7")
    I(f"s_mul_i32 s{sT0}, s{sT0}, s{sSTR}")
    for i in range(16):
        I(f"s_add_u32 m0, s{sLDSW}, {16384 + i*1024}")
        if i: I(f"s_add_u32 s{sT0}, s{sT0}, s{sT1}")
        I(f"buffer_load_dwordx4 v{vT+1}, s[{rW}:{rW+3}], s{sT0} offen {wf} lds")
    I(f"s_mov_b32 s{sTASK}, 1")
    G.L("L_gateLoads")
    srd(rG, sGW, 896)
    I(f"s_mul_i32 s{sT0}, s{sWAVE}, 896")
    I(f"s_add_u32 s{rX}, s{sX}, s{sT0}")
    I(f"s_addc_u32 s{rX+1}, s{sX+1}, 0")
    I(f"s_and_b32 s{rX+1}, s{rX+1}, 0xffff")
    I(f"s_mov_b32 s{rX+2}, 896")
    I(f"s_mov_b32 s{rX+3}, 0x20000")
    I(f"v_lshlrev_b32 v{vT}, 4, v{vLANE}")
    I(f"buffer_load_dwordx4 v[{vGX}:{vGX+3}], v{vT}, s[{rX}:{rX+3}], 0 offen {wf}")
    I(f"buffer_load_dwordx4 v[{vGX+4}:{vGX+7}], v{vT}, s[{rG}:{rG+3}], 0 offen {wf}")
    G.L("L_roleDone")
    role_mark = G.vm_n; G.vm_bound += 21
    for t in range(kearly, kfirst): k_tile(t, win=winfirst)
    v_loads(vrole, win=winfirst)
    I(f"v_and_b32 v{vT+6}, 3, v{vN_}")
    I(f"v_lshrrev_b32 v{vT+7}, 2, v{vN_}")
    I(f"v_lshl_or_b32 v{vT+6}, v{vT+6}, 2, v{vT+7}")
    I(f"v_xor_b32 v{vT+7}, v{vG_}, v{vN_}")
    I(f"v_lshlrev_b32 v{vT+7}, 4, v{vT+7}")
    I(f"v_lshl_or_b32 v{vT+6}, v{vT+6}, 9, v{vT+7}")
    I(f"v_add_u32 v{vKA}, s{sLDSW}, v{vT+6}")
    for j in range(1, 4):
        I(f"v_xor_b32 v{vKA+j}, {j << 6}, v{vKA}")
    I(f"s_mov_b32 s{sSELLO}, 0x05040100")
    I(f"s_mov_b32 s{sSELHI}, 0x07060302")
    I(f"s_mov_b32 s{sSC}, {f32(math.log2(math.e)/16.0)}")
    I(f"s_cmp_eq_u32 s{sC}, 7")
    I(f"s_cselect_b32 s{sT1}, 0, {4096*896}")
    I(f"s_cselect_b32 s{sT2}, 0, {1792*896}")
    I(f"s_mov_b32 s{rWO}, s{sWO}")
    I(f"s_and_b32 s{rWO+1}, s{sWO+1}, 0xffff")
    I(f"s_mov_b32 s{rWO+2}, s{sT1}")
    I(f"s_mov_b32 s{rWO+3}, 0x20000")
    I(f"s_mov_b32 s{rW2}, s{sW2}")
    I(f"s_and_b32 s{rW2+1}, s{sW2+1}, 0xffff")
    I(f"s_mov_b32 s{rW2+2}, s{sT2}")
    I(f"s_mov_b32 s{rW2+3}, 0x20000")
    srd(rOUT, sOUT, 3584)
    I("s_waitcnt lgkmcnt(0)")
    I(f"s_add_u32 s{sTAG}, s{sTAG}, 1")
    I(f"s_waitcnt vmcnt({G.vm_n - role_mark})")
    stamp(10)
    tr("role_landed")
    I(f"s_cmp_eq_u32 s{sTASK}, 0")
    I("s_cbranch_scc1 L_taskEnd")
    vA, vB, vC = vRING, vRING + 16, vRING + 80
    I(f"v_and_b32 v{vT}, 3, v{vLANE}")
    I(f"v_lshlrev_b32 v{vT}, 8, v{vT}")
    I(f"v_lshl_add_u32 v{vT}, v{vG_}, 3, v{vT}")
    I(f"s_lshl_b32 s{sT1}, s{sWAVE}, 10")
    I(f"s_add_u32 s{sT1}, s{sT1}, {XI}")
    I(f"v_add_u32 v{vT}, s{sT1}, v{vT}")
    wimg_rd(vT+8, vT+1, vT+2)
    I(f"s_add_u32 s{sT1}, s{sLDSW}, 16384")
    I(f"v_add_u32 v{vT+8}, s{sT1}, v{vT+8}")
    for ct in range(1, 4):
        I(f"v_xor_b32 v{vT+8+ct}, {ct << 5}, v{vT+8}")
    for s_ in range(4):
        I(f"ds_read_b64 v[{vA+4*s_}:{vA+4*s_+1}], v{vT} offset:{s_*64}")
        I(f"ds_read_b64 v[{vA+4*s_+2}:{vA+4*s_+3}], v{vT} offset:{s_*64+32}")
    def b_reads(s_):
        for ct in range(4):
            d = vB + 16*s_ + 4*ct
            I(f"ds_read_b64_tr_b16 v[{d}:{d+1}], v{vT+8+ct} offset:{s_*4096}")
            I(f"ds_read_b64_tr_b16 v[{d+2}:{d+3}], v{vT+8+ct} offset:{s_*4096+2048}")
    I("s_waitcnt lgkmcnt(7)")
    b_reads(0)
    for s_ in range(4):
        if s_ < 3:
            I("s_waitcnt lgkmcnt(7)")
            b_reads(s_ + 1)
            I("s_waitcnt lgkmcnt(8)")
        else:
            I("s_waitcnt lgkmcnt(0)")
        for ct in range(4):
            d = vB + 16*s_ + 4*ct
            c = "0" if s_ == 0 else f"v[{vC+4*ct}:{vC+4*ct+3}]"
            I(f"v_mfma_f32_16x16x32_bf16 v[{vC+4*ct}:{vC+4*ct+3}], v[{vA+4*s_}:{vA+4*s_+3}], v[{d}:{d+3}], {c}")
    I(f"s_lshl_b32 s{sT1}, s{sWAVE}, 10")
    I(f"s_add_u32 s{sT1}, s{sT1}, {RT}")
    I(f"v_lshlrev_b32 v{vT+2}, 2, v{vLANE}")
    I(f"v_add_u32 v{vT+3}, s{sT1}, v{vT+2}")
    keep_group(vC, 4)
    for r in range(4):
        I(f"ds_write_b32 v{vT+3}, v{vC+r} offset:{r*256}")
    I(f"s_lshl_b32 s{sT1}, s{sWAVE}, 8")
    I(f"s_add_u32 s{sT1}, s{sT1}, {RT}")
    I(f"v_add_u32 v{vT+3}, s{sT1}, v{vT+2}")
    I(f"s_mul_i32 s{sT1}, s{sWAVE}, s{sBSTR}")
    I(f"s_add_u32 s{sT1}, s{sT1}, s{sOUTB}")
    I(f"v_add_u32 v{vT+2}, s{sT1}, v{vT+2}")
    I(f"v_mov_b32 v{vT+13}, s{sTAG}")
    I("s_waitcnt lgkmcnt(0)")
    I("s_barrier")
    for w in range(4):
        I(f"ds_read_b32 v{vC+w}, v{vT+3} offset:{w*1024}")
    I("s_waitcnt lgkmcnt(0)")
    I(f"v_add_f32 v{vC}, v{vC}, v{vC+1}")
    I(f"v_add_f32 v{vC+2}, v{vC+2}, v{vC+3}")
    I(f"v_add_f32 v{vC}, v{vC}, v{vC+2}")
    I(f"v_max_f32 v{vC}, s{sLO}, v{vC}")
    I(f"v_mov_b32_dpp v{vC+1}, v{vC} quad_perm:[1,0,3,2] row_mask:0xf bank_mask:0xf")
    I(f"v_cvt_pk_bf16_f32 v{vT+12}, v{vC}, v{vC+1}")
    I("s_mov_b32 exec_lo, 0x55555555")
    I("s_mov_b32 exec_hi, 0x55555555")
    I(f"global_store_dwordx2 v{vT+2}, v[{vT+12}:{vT+13}], s[{sWS}:{sWS+1}] sc1")
    I("s_mov_b64 exec, -1")
    G.L("L_taskEnd")
    xa, ga = vGX, vGX + 4
    I(f"v_mov_b32 v{vT}, 0")
    for j in range(4):
        I(f"v_lshlrev_b32 v{vT+1}, 16, v{xa+j}")
        I(f"v_lshlrev_b32 v{vT+2}, 16, v{ga+j}")
        I(f"v_and_b32 v{vT+3}, 0xffff0000, v{xa+j}")
        I(f"v_and_b32 v{vT+8}, 0xffff0000, v{ga+j}")
        I(f"v_fmac_f32 v{vT}, v{vT+1}, v{vT+2}")
        I(f"v_fmac_f32 v{vT}, v{vT+3}, v{vT+8}")
    for ror in (8, 4, 2, 1):
        I(f"v_add_f32_dpp v{vT}, v{vT}, v{vT} row_ror:{ror} row_mask:0xf bank_mask:0xf")
    xsum(vT, vT+1)
    I(f"v_mul_f32 v{vT}, {f32(-math.log2(math.e))}, v{vT}")
    I(f"v_exp_f32 v{vT}, v{vT}")
    I(f"v_add_f32 v{vT}, 1.0, v{vT}")
    I(f"v_rcp_f32 v{vT}, v{vT}")
    I(f"s_lshl_b32 s{sT1}, s{sWAVE}, 2")
    I(f"s_add_u32 s{sT1}, s{sT1}, {M_G}")
    I(f"v_mov_b32 v{vT+1}, s{sT1}")
    I(f"ds_write_b32 v{vT+1}, v{vT}")
    stamp(1)
    I("s_waitcnt lgkmcnt(0)") if trace else None
    tr("role_done")
    G.vm_bound = G.vm_n - role_mark + 1
    if We:
        if steer == 'odd':
            I(f"s_and_b32 s{sT0}, s{sS}, 1")
            I(f"s_cmp_eq_u32 s{sT0}, 1")
        else:
            I(f"s_cmp_eq_u32 s{sTASK}, 1")
        I(f"s_cselect_b64 s[{sPAR}:{sPAR+1}], -1, 0")
        par_on[0] = True
        set_par()
    for t in range(kfirst, 4): k_tile(t)
    v_loads(vpre)
    I(f"s_lshl_b32 s{sT0}, s{sHKV}, 2")
    I(f"s_add_u32 s{sT0}, s{sT0}, s{sB}")
    I(f"s_lshl_b32 s{sT0}, s{sT0}, 11")
    I(f"s_lshl_b32 s{sT1}, s{sWAVE}, 9")
    I(f"s_add_u32 s{sT0}, s{sT0}, s{sT1}")
    I(f"v_lshlrev_b32 v{vA0}, 3, v{vLANE}")
    I(f"v_add_u32 v{vA0}, s{sT0}, v{vA0}")
    vq = vS
    qload = f"global_load_dwordx2 v[{vq}:{vq+1}], v{vA0}, s[{sWS}:{sWS+1}] sc1"
    window()
    stamp(11)
    tr("q_issue")
    qg = vm(qload)
    v_loads(cover)
    I(f"s_lshl_b32 s{sT1}, s{sWAVE}, 8")
    I(f"s_add_u32 s{sT1}, s{sT1}, {QI}")
    I(f"v_lshlrev_b32 v{vT}, 2, v{vLANE}")
    I(f"v_add_u32 v{vT}, s{sT1}, v{vT}")
    I(f"v_and_b32 v{vT+1}, 1, v{vLANE}")
    I(f"v_lshlrev_b32 v{vT+1}, 9, v{vT+1}")
    I(f"v_lshl_add_u32 v{vT+1}, v{vG_}, 4, v{vT+1}")
    I(f"v_add_u32 v{vT+1}, {QI}, v{vT+1}")
    G.vm_wait(qg)
    poll("q", lambda: I(qload), lambda: tagcheck([vq+1]))
    stamp(2)
    tr("q_ok")
    if W2: Wc[0] = W2
    set_par()
    I(f"ds_write_b32 v{vT}, v{vq}")
    I("s_waitcnt lgkmcnt(0)")
    I("s_barrier")
    for s_ in range(8):
        I(f"ds_read_b128 a[{aQ+4*s_}:{aQ+4*s_+3}], v{vT+1} offset:{s_*64}")
    def k_reads(t):
        for s in range(8):
            d = aKT + 32*(t & 1) + 4*s
            I(f"ds_read_b128 a[{d}:{d+3}], v{vKA + (s & 3)} offset:{(t & 3)*8192 + (s >> 2)*256}")
    def qk_mfma(t):
        for s in range(8):
            d = aKT + 32*(t & 1) + 4*s
            c = "0" if s == 0 else f"v[{vS+4*t}:{vS+4*t+3}]"
            I(f"v_mfma_f32_16x16x32_bf16 v[{vS+4*t}:{vS+4*t+3}], a[{d}:{d+3}], a[{aQ+4*s}:{aQ+4*s+3}], {c}")
    vWD = vA0
    wimg_src(vWD, 896, vT+6, vT+7)
    I(f"s_lshl_b32 s{sWA}, s{sHKV}, 9")
    I(f"s_lshl_b32 s{sT1}, s{sB}, 7")
    I(f"s_add_u32 s{sWA}, s{sWA}, s{sT1}")
    I(f"s_lshl_b32 s{sT1}, s{sWAVE}, 5")
    I(f"s_add_u32 s{sWA}, s{sWA}, s{sT1}")
    I(f"s_mul_i32 s{sWA}, s{sWA}, 896")
    I(f"s_lshl_b32 s{sT2}, s{sC}, 7")
    I(f"s_add_u32 s{sWA}, s{sWA}, s{sT2}")
    I(f"s_mul_i32 s{sWB_}, s{sHKV}, 224")
    I(f"s_mul_i32 s{sT1}, s{sB}, 56")
    I(f"s_add_u32 s{sWB_}, s{sWB_}, s{sT1}")
    I(f"s_lshl_b32 s{sT1}, s{sWAVE}, 4")
    I(f"s_add_u32 s{sWB_}, s{sWB_}, s{sT1}")
    I(f"s_mul_i32 s{sWB_}, s{sWB_}, 896")
    I(f"s_add_u32 s{sWB_}, s{sWB_}, s{sT2}")
    wnext = [0]; wl = [G.vm_n - 1]
    def w_loads(n):
        for _ in range(min(n, 6 - wnext[0])):
            i = wnext[0]; wnext[0] += 1
            if skip_w: continue
            if i < 4:
                I(f"s_lshl_b32 s{sT1}, s{sWAVE}, 12")
                I(f"s_add_u32 m0, s{sT1}, {WOI + i*1024}")
                if i: I(f"s_add_u32 s{sWA}, s{sWA}, {8*896}")
                window()
                wl[0] = vm(f"buffer_load_dwordx4 v{vWD}, s[{rWO}:{rWO+3}], s{sWA} offen {wf} lds")
            else:
                k = i - 4
                I(f"s_lshl_b32 s{sT1}, s{sWAVE}, 11")
                I(f"s_add_u32 m0, s{sT1}, {W2I + k*1024}")
                if k: I(f"s_add_u32 s{sWB_}, s{sWB_}, {8*896}")
                window()
                wl[0] = vm(f"buffer_load_dwordx4 v{vWD}, s[{rW2}:{rW2+3}], s{sWB_} offen {wf} lds")
    I("s_waitcnt lgkmcnt(0)")
    k_reads(0)
    for t in range(4):
        I("s_waitcnt lgkmcnt(0)")
        if t < 3: k_reads(t + 1)
        k_tile(t + 4)
        qk_mfma(t)
    w_loads(6)
    vH, vHA = vT + 8, vT + 6
    I(f"s_mul_i32 s{sT0}, s{sWAVE}, 896")
    I(f"s_mul_i32 s{sT1}, s{sHKV}, 112")
    I(f"s_add_u32 s{sT0}, s{sT0}, s{sT1}")
    I(f"s_mul_i32 s{sT1}, s{sB}, 28")
    I(f"s_add_u32 s{sT0}, s{sT0}, s{sT1}")
    I(f"s_lshl_b32 s{sT0}, s{sT0}, 3")
    I(f"s_add_u32 s{sT0}, s{sT0}, {HOFF}")
    I(f"v_min_u32 v{vHA}, 27, v{vLANE}")
    I(f"v_lshlrev_b32 v{vHA}, 3, v{vHA}")
    I(f"v_add_u32 v{vHA}, s{sT0}, v{vHA}")
    hload = f"global_load_dwordx2 v[{vH}:{vH+1}], v{vHA}, s[{sWS}:{sWS+1}] sc1"
    hg = vm(hload)
    v_loads(vmid)
    G.vm_wait(kidx[4])
    k_reads(4)
    for t in range(4, 8):
        I("s_waitcnt lgkmcnt(0)")
        if t < 7:
            G.vm_wait(kidx[t + 1])
            k_reads(t + 1)
        qk_mfma(t)
        if t < 7: v_loads(vqk[t - 4])
    stamp(3)
    tr("qk_done")
    G.vm_wait(hg)
    I("s_mov_b64 exec, 0xfffffff")
    poll("h", lambda: I(hload), lambda: tagcheck([vH+1]))
    I("s_mov_b64 exec, -1")
    I(f"v_cmp_gt_u32 vcc, 28, v{vLANE}")
    I(f"v_lshlrev_b32 v{vT+6}, 1, v{vLANE}")
    I(f"v_cndmask_b32 v{vH}, 0, v{vH}, vcc")
    img_pos(vT+7, vT+6, vT+2)
    I(f"s_lshl_b32 s{sT1}, s{sWAVE}, 7")
    I(f"s_add_u32 s{sT1}, s{sT1}, {HI}")
    I(f"v_add_u32 v{vT+7}, s{sT1}, v{vT+7}")
    I("s_mov_b32 exec_hi, 0")
    I(f"ds_write_b32 v{vT+7}, v{vH}")
    I("s_mov_b64 exec, -1")
    set_par()
    vM, vL = vT, vT + 1
    I(f"v_max3_f32 v{vM}, v{vS}, v{vS+1}, v{vS+2}")
    for k in range(3, 31, 2):
        I(f"v_max3_f32 v{vM}, v{vM}, v{vS+k}, v{vS+k+1}")
    I(f"v_max_f32 v{vM}, v{vM}, v{vS+31}")
    xsum(vM, vT+6, "v_max_f32")
    I(f"v_mul_f32 v{vM}, s{sSC}, v{vM}")
    for k in range(32):
        I(f"v_fma_f32 v{vS+k}, v{vS+k}, s{sSC}, -v{vM}")
    for k in range(32):
        I(f"v_exp_f32 v{vS+k}, v{vS+k}")
    I(f"v_add_f32 v{vL}, v{vS}, v{vS+1}")
    for k in range(2, 32):
        I(f"v_add_f32 v{vL}, v{vL}, v{vS+k}")
    for k in range(16):
        I(f"v_cvt_pk_bf16_f32 v{vP+k}, v{vS+2*k}, v{vS+2*k+1}")
    xsum(vL, vT+6)
    I(f"v_and_b32 v{vT+2}, 1, v{vLANE}")
    I(f"v_lshlrev_b32 v{vT+2}, 4, v{vT+2}")
    I(f"v_add_u32 v{vT+2}, {MISC}, v{vT+2}")
    I(f"s_lshl_b32 s{sT1}, s{sWAVE}, 2")
    I(f"v_add_u32 v{vT+3}, s{sT1}, v{vT+2}")
    I(f"ds_write_b32 v{vT+3}, v{vM} offset:{M_MX - MISC}")
    I(f"ds_write_b32 v{vT+3}, v{vL} offset:{M_LS - MISC}")
    v_loads(vpost[0])
    I(f"v_lshlrev_b32 v{tRW}, 3, v{vN_}")
    I(f"v_add_u32 v{tRW}, s{sLDSW}, v{tRW}")
    I(f"v_and_b32 v{vT+6}, 3, v{vLANE}")
    I(f"v_lshlrev_b32 v{vT+6}, 8, v{vT+6}")
    I(f"v_lshrrev_b32 v{vT+7}, 2, v{vLANE}")
    I(f"v_lshl_add_u32 v{vT+6}, v{vT+7}, 3, v{vT+6}")
    I(f"s_and_b32 s{sT1}, s{sWAVE}, 1")
    I(f"s_lshl_b32 s{sT1}, s{sT1}, 10")
    I(f"s_lshr_b32 s{sT2}, s{sWAVE}, 1")
    I(f"s_lshl_b32 s{sT2}, s{sT2}, 2")
    I(f"s_add_u32 s{sT1}, s{sT1}, s{sT2}")
    I(f"v_add_u32 v{tRR}, s{sT1}, v{vT+6}")
    I(f"v_add_u32 v{tRR2}, 65536, v{tRR}")
    I(f"s_lshl_b32 s{sT1}, s{sWAVE}, 9")
    I(f"v_lshlrev_b32 v{vT+6}, 3, v{vLANE}")
    I(f"v_add_u32 v{vT+6}, s{sT1}, v{vT+6}")
    I(f"s_lshl_b32 s{sT0}, s2, 11")
    I(f"s_add_u32 s{sT0}, s{sT0}, {ODOFF}")
    I(f"v_add_u32 v{tOD}, s{sT0}, v{vT+6}")
    I(f"s_lshl_b32 s{sT0}, s{sWAVE}, 3")
    I(f"s_add_u32 s{sT0}, s{sT0}, s{sHKV}")
    I(f"s_lshl_b32 s{sT1}, s{sT0}, 14")
    I(f"s_lshl_b32 s{sT2}, s{sB}, 9")
    I(f"s_add_u32 s{sT1}, s{sT1}, s{sT2}")
    I(f"s_add_u32 s{sT1}, s{sT1}, {ODOFF + 0x1000}")
    I(f"v_lshlrev_b32 v{vT+6}, 3, v{vLANE}")
    I(f"v_add_u32 v{tG1}, s{sT1}, v{vT+6}")
    I(f"v_add_u32 v{tG2}, 0x2000, v{tG1}")
    I(f"s_lshl_b32 s{sT0}, s{sT0}, 8")
    I(f"s_add_u32 s{sT0}, s{sT0}, {OSOFF}")
    I(f"v_and_b32 v{vT+6}, 31, v{vLANE}")
    I(f"v_lshlrev_b32 v{vT+6}, 3, v{vT+6}")
    I(f"v_add_u32 v{tGS}, s{sT0}, v{vT+6}")
    I(f"v_lshlrev_b32 v{vT+7}, 1, v{vLANE}")
    img_pos(tOI, vT+7, vT+6)
    I(f"s_lshl_b32 s{sT1}, s{sWAVE}, 8")
    I(f"s_add_u32 s{sT1}, s{sT1}, {OI}")
    I(f"v_add_u32 v{tOI}, s{sT1}, v{tOI}")
    I(f"s_lshl_b32 s{sT0}, s{sC}, 14")
    I(f"s_lshl_b32 s{sT1}, s{sWAVE}, 7")
    I(f"s_add_u32 s{sT0}, s{sT0}, s{sT1}")
    I(f"s_add_u32 s{sT0}, s{sT0}, {YOFF}")
    I(f"v_lshlrev_b32 v{vT+6}, 3, v{vN_}")
    I(f"v_add_u32 v{vT+6}, s{sT0}, v{vT+6}")
    I(f"s_lshl_b32 s{sT1}, s{sHKV}, 2")
    I(f"s_add_u32 s{sT1}, s{sT1}, s{sB}")
    I(f"s_lshl_b32 s{sT1}, s{sT1}, 9")
    I(f"v_lshl_add_u32 v{tYS}, v{vG_}, 17, v{vT+6}")
    I(f"v_add_u32 v{tYS}, s{sT1}, v{tYS}")
    I(f"s_lshl_b32 s{sT1}, s{sB}, 17")
    I(f"s_add_u32 s{sT1}, s{sT1}, 0x1000")
    I(f"v_lshl_add_u32 v{tYG}, v{vG_}, 9, v{vT+6}")
    I(f"v_add_u32 v{tYG}, s{sT1}, v{tYG}")
    I(f"v_add_u32 v{tYG2}, 0x2000, v{tYG}")
    I(f"v_lshlrev_b32 v{tOUT}, 1, v{vN_}")
    I(f"v_mov_b32 v{tPO+1}, s{sTAG}")
    I(f"v_mov_b32 v{tPY+1}, s{sTAG}")
    I(f"s_mul_i32 s{sOUTS}, s{sB}, 896")
    I(f"s_lshl_b32 s{sT1}, s{sC}, 7")
    I(f"s_add_u32 s{sOUTS}, s{sOUTS}, s{sT1}")
    I(f"s_lshl_b32 s{sT1}, s{sWAVE}, 5")
    I(f"s_add_u32 s{sOUTS}, s{sOUTS}, s{sT1}")
    vWB = vT + 9
    wimg_rd(vWB, vT+6, vT+7)
    I(f"s_lshl_b32 s{sT1}, s{sWAVE}, 5")
    I(f"v_xor_b32 v{vWB}, s{sT1}, v{vWB}")
    I(f"v_add_u32 v{vWB+1}, {W2I}, v{vWB}")
    I(f"v_add_u32 v{vWB}, {WOI}, v{vWB}")
    I(f"v_and_b32 v{vT+7}, 3, v{vLANE}")
    I(f"v_lshlrev_b32 v{vWB+2}, 8, v{vT+7}")
    I(f"v_lshl_add_u32 v{vWB+2}, v{vG_}, 4, v{vWB+2}")
    I(f"v_add_u32 v{vWB+2}, {OI}, v{vWB+2}")
    vHB = vT + 6
    I(f"v_lshlrev_b32 v{vHB}, 7, v{vT+7}")
    I(f"v_lshl_add_u32 v{vHB}, v{vG_}, 4, v{vHB}")
    I(f"v_add_u32 v{vHB}, {HI}, v{vHB}")
    if pretouch:
        vD = vKD
        I(f"s_cmp_eq_u32 s{sC}, 7")
        I("s_cbranch_scc1 L_nopt")
        I(f"global_load_dwordx2 v[{vD}:{vD+1}], v{tGS}, s[{sWS}:{sWS+1}] sc1")
        for k in range(8):
            a = tG1 if k < 4 else tG2
            I(f"global_load_dwordx2 v[{vD}:{vD+1}], v{a}, s[{sWS}:{sWS+1}] offset:{(k & 3)*2048 - 4096} sc1")
        if pretouch > 1:
            I(f"s_sub_u32 s{sT1}, 7, s{sB}")
            I(f"s_cmp_eq_u32 s{sS}, s{sT1}")
            I("s_cbranch_scc0 L_nopt")
            for k in range(8):
                a = tYG if k < 4 else tYG2
                I(f"global_load_dwordx2 v[{vD}:{vD+1}], v{a}, s[{sWS}:{sWS+1}] offset:{(k & 3)*2048 - 4096} sc1")
        G.L("L_nopt")
        G.vm_bound += 17
    def pv(beta, h):
        j0 = beta*16 + h*8
        G.vm_wait(vidx[j0 + 7])
        for c4 in range(4):
            src = []
            for q in range(8):
                f, b0 = v_reg(j0 + q)
                if f == "a":
                    t = vRD + 8*(c4 & 1) + q
                    I(f"v_accvgpr_read_b32 v{t}, a{b0 + c4}")
                    src.append(t)
                else:
                    src.append(b0 + c4)
            for e, sel in ((0, sSELLO), (1, sSELHI)):
                pt = vPT + 8*(c4 & 1) + 4*e
                for i in range(4):
                    I(f"v_perm_b32 v{pt+i}, v{src[2*i+1]}, v{src[2*i]}, s{sel}")
            for e in (0, 1):
                pt = vPT + 8*(c4 & 1) + 4*e
                acc = aACC + 4*(h*8 + 2*c4 + e)
                c = "0" if beta == 0 else f"a[{acc}:{acc+3}]"
                I(f"v_mfma_f32_16x16x32_bf16 a[{acc}:{acc+3}], v[{vP+4*beta}:{vP+4*beta+3}], v[{pt}:{pt+3}], {c}")
    pv(0, 0); v_loads(vpost[1])
    G.vm_wait(wl[0])
    I("s_waitcnt lgkmcnt(0)")
    stamp(14)
    I("s_barrier")
    stamp(15)
    tr("B2")
    vR = vRD
    I(f"ds_read_b128 v[{vR}:{vR+3}], v{vT+2} offset:{M_MX - MISC}")
    I(f"ds_read_b128 v[{vR+4}:{vR+7}], v{vT+2} offset:{M_LS - MISC}")
    I(f"v_mov_b32 v{vT+7}, {M_G}")
    I(f"ds_read_b128 v[{vR+8}:{vR+11}], v{vT+7}")
    for s in range(2):
        I(f"ds_read_b64_tr_b16 a[{aW2+4*s}:{aW2+4*s+1}], v{vWB+1} offset:{s*4096}")
        I(f"ds_read_b64_tr_b16 a[{aW2+4*s+2}:{aW2+4*s+3}], v{vWB+1} offset:{s*4096+2048}")
        I(f"ds_read_b128 v[{vPT+4*s}:{vPT+4*s+3}], v{vHB} offset:{s*64}")
    I("s_waitcnt lgkmcnt(6)")
    for r in range(4):
        I(f"v_readfirstlane_b32 s{sG+r}, v{vR+8+r}")
    I(f"v_max3_f32 v{vM}, v{vR}, v{vR+1}, v{vR+2}")
    I(f"v_max_f32 v{vM}, v{vM}, v{vR+3}")
    for w in range(4):
        I(f"v_sub_f32 v{vR+w}, v{vR+w}, v{vM}")
    for w in range(4):
        I(f"v_exp_f32 v{vR+w}, v{vR+w}")
    I(f"v_mul_f32 v{vL}, v{vR}, v{vR+4}")
    for w in range(1, 4):
        I(f"v_fmac_f32 v{vL}, v{vR+w}, v{vR+4+w}")
    I(f"s_lshr_b32 s{sT1}, s{sWAVE}, 1")
    for w in range(4):
        I(f"v_readlane_b32 s{sF+w}, v{vR+w}, s{sT1}")
    I(f"v_and_b32 v{vT+7}, 2, v{vLANE}")
    I(f"v_cmp_eq_u32 vcc, 0, v{vT+7}")
    I(f"v_cndmask_b32 v{vR+12}, v{vL}, v{vM}, vcc")
    I(f"v_mov_b32 v{vR+13}, s{sTAG}")
    I(f"s_lshl_b32 s{sT1}, s2, 5")
    I(f"s_add_u32 s{sT1}, s{sT1}, {OSOFF}")
    I(f"v_lshlrev_b32 v{vT+7}, 3, v{vLANE}")
    I(f"v_add_u32 v{vT+7}, s{sT1}, v{vT+7}")
    I(f"s_cmp_eq_u32 s{sWAVE}, 0")
    I("s_cbranch_scc0 L_nostat")
    I("s_mov_b64 exec, 0xf")
    I(f"global_store_dwordx2 v{vT+7}, v[{vR+12}:{vR+13}], s[{sWS}:{sWS+1}] sc1")
    I("s_mov_b64 exec, -1")
    G.L("L_nostat")
    set_par()
    G.vm_bound += 1
    vYB, vYA = vT + 12, vT + 4
    I("s_waitcnt lgkmcnt(0)")
    for s in range(2):
        c = "0" if s == 0 else f"v[{vYB}:{vYB+3}]"
        I(f"v_mfma_f32_16x16x32_bf16 v[{vYB}:{vYB+3}], v[{vPT+4*s}:{vPT+4*s+3}], a[{aW2+4*s}:{aW2+4*s+3}], {c}")
    for s in range(4):
        I(f"ds_read_b64_tr_b16 a[{aWO+4*s}:{aWO+4*s+1}], v{vWB} offset:{s*4096}")
        I(f"ds_read_b64_tr_b16 a[{aWO+4*s+2}:{aWO+4*s+3}], v{vWB} offset:{s*4096+2048}")
    v_loads(vpost[2])
    pv(0, 1); v_loads(vpost[3])
    pv(1, 0); v_loads(4); pv(1, 1); v_loads(64)
    stamp(4)
    tr("allV_issued")
    def red_writes(lo):
        I("s_mov_b64 exec, 0xffff")
        for i in range(lo, lo + 8):
            I(f"ds_write_b64 v{tRW}, a[{aACC+4*i}:{aACC+4*i+1}] offset:{i*128}")
        I("s_mov_b64 exec, -1")
    pv(2, 0); pv(2, 1); pv(3, 0)
    red_writes(0)
    pv(3, 1)
    stamp(5)
    tr("pv_done")
    red_writes(8)
    I("s_waitcnt lgkmcnt(0)")
    I("s_barrier")
    vR = vRING
    for w in range(4):
        for e in range(2):
            I(f"ds_read_b32 v{vR+2*w+e}, v{tRR if w < 2 else tRR2} offset:{(w & 1)*32768 + e*128}")
    for w in range(4):
        I(f"s_waitcnt lgkmcnt({6-2*w})")
        for e in range(2):
            if w == 0: I(f"v_mul_f32 v{vR+8+e}, s{sF}, v{vR+e}")
            else: I(f"v_fmac_f32 v{vR+8+e}, s{sF+w}, v{vR+2*w+e}")
    I(f"v_cvt_pk_bf16_f32 v{tPO}, v{vR+8}, v{vR+9}")
    I(f"global_store_dwordx2 v{tOD}, v[{tPO}:{tPO+1}], s[{sWS}:{sWS+1}] sc1")
    stamp(6)
    tr("o_pub")
    I(f"s_cmp_eq_u32 s{sC}, 7")
    I("s_cbranch_scc1 L_fin")
    vO = vRING + 16
    vSt = vRING + 32
    def s_load():
        I(f"global_load_dwordx2 v[{vSt}:{vSt+1}], v{tGS}, s[{sWS}:{sWS+1}] sc1")
    def o_loads():
        for k in range(8):
            a = tG1 if k < 4 else tG2
            I(f"global_load_dwordx2 v[{vO+2*k}:{vO+2*k+1}], v{a}, s[{sWS}:{sWS+1}] offset:{(k & 3)*2048 - 4096} sc1")
    s_load()
    o_loads()
    I("s_waitcnt vmcnt(8)")
    poll("s", s_load, lambda: tagcheck([vSt+1]))
    vW0 = vSt + 2
    I(f"v_mov_b32_dpp v{vW0}, v{vSt} row_shr:2 row_mask:0xf bank_mask:0xf")
    I(f"v_mov_b32 v{vW0+1}, v{vW0}")
    for ror in (4, 8):
        I(f"v_max_f32_dpp v{vW0+1}, v{vW0+1}, v{vW0+1} row_ror:{ror} row_mask:0xf bank_mask:0xf")
    I(f"v_mov_b32 v{vW0+2}, v{vW0+1}")
    I(f"v_permlane16_swap_b32 v{vW0+1}, v{vW0+2}")
    I(f"v_max_f32 v{vW0+1}, v{vW0+1}, v{vW0+2}")
    I(f"v_sub_f32 v{vW0}, v{vW0}, v{vW0+1}")
    I(f"v_exp_f32 v{vW0}, v{vW0}")
    I(f"v_mul_f32 v{vW0+1}, v{vW0}, v{vSt}")
    for ror in (4, 8):
        I(f"v_add_f32_dpp v{vW0+1}, v{vW0+1}, v{vW0+1} row_ror:{ror} row_mask:0xf bank_mask:0xf")
    I(f"v_mov_b32 v{vW0+2}, v{vW0+1}")
    I(f"v_permlane16_swap_b32 v{vW0+1}, v{vW0+2}")
    I(f"v_add_f32 v{vW0+1}, v{vW0+1}, v{vW0+2}")
    I(f"v_rcp_f32 v{vW0+1}, v{vW0+1}")
    I(f"s_lshr_b32 s{sT1}, s{sB}, 1")
    I(f"s_add_u32 s{sT1}, s{sT1}, 2")
    I(f"v_mul_f32 v{vW0}, v{vW0}, v{vW0+1}")
    for k in range(8):
        I(f"v_readlane_b32 s{sWT+k}, v{vW0}, s{sT1}")
        if k < 7: I(f"s_add_u32 s{sT1}, s{sT1}, 4")
    I("s_waitcnt vmcnt(0)")
    stamp(16)
    poll("o", o_loads, lambda: tagcheck([vO+2*k+1 for k in range(8)]))
    stamp(17)
    tr("o_ok")
    vo0, vo1 = vW0+3, vW0+4
    for k in range(8):
        I(f"v_lshlrev_b32 v{vW0+5}, 16, v{vO+2*k}")
        I(f"v_and_b32 v{vW0+6}, 0xffff0000, v{vO+2*k}")
        if k == 0:
            I(f"v_mul_f32 v{vo0}, s{sWT}, v{vW0+5}")
            I(f"v_mul_f32 v{vo1}, s{sWT}, v{vW0+6}")
        else:
            I(f"v_fmac_f32 v{vo0}, s{sWT+k}, v{vW0+5}")
            I(f"v_fmac_f32 v{vo1}, s{sWT+k}, v{vW0+6}")
    I(f"v_cvt_pk_bf16_f32 v{vo0}, v{vo0}, v{vo1}")
    I(f"ds_write_b32 v{tOI}, v{vo0}")
    I("s_waitcnt lgkmcnt(0)")
    I("s_barrier")
    vOA = vRING + 64
    for s in range(4):
        I(f"ds_read_b128 v[{vOA+4*s}:{vOA+4*s+3}], v{vWB+2} offset:{s*64}")
    for s in range(4):
        I(f"s_waitcnt lgkmcnt({3-s})")
        c = "0" if s == 0 else f"v[{vYA}:{vYA+3}]"
        I(f"v_mfma_f32_16x16x32_bf16 v[{vYA}:{vYA+3}], v[{vOA+4*s}:{vOA+4*s+3}], a[{aWO+4*s}:{aWO+4*s+3}], {c}")
    vYY = vOA + 16
    for r in range(4):
        I(f"v_sub_f32 v{vYY+r}, v{vYA+r}, v{vYB+r}")
        I(f"v_fma_f32 v{vYY+r}, v{vYY+r}, s{sG+r}, v{vYB+r}")
    keep_group(vYY, 1)
    I(f"v_mov_b32 v{tPY}, v{vYY}")
    I(f"global_store_dwordx2 v{tYS}, v[{tPY}:{tPY+1}], s[{sWS}:{sWS+1}] sc1")
    stamp(18)
    tr("y_pub")
    I(f"s_sub_u32 s{sT1}, 7, s{sB}")
    I(f"s_cmp_eq_u32 s{sS}, s{sT1}")
    I("s_cbranch_scc0 L_fin")
    vY = vO
    def y_loads():
        for k in range(8):
            a = tYG if k < 4 else tYG2
            I(f"global_load_dwordx2 v[{vY+2*k}:{vY+2*k+1}], v{a}, s[{sWS}:{sWS+1}] offset:{(k & 3)*2048 - 4096} sc1")
    y_loads()
    I("s_waitcnt vmcnt(0)")
    poll("y", y_loads, lambda: tagcheck([vY+2*k+1 for k in range(8)]))
    for st in (2, 4, 8):
        for k in range(0, 16, 2*st):
            I(f"v_add_f32 v{vY+k}, v{vY+k}, v{vY+k+st}")
    xsum(vY, vY+1)
    I(f"v_cvt_pk_bf16_f32 v{vY}, v{vY}, v{vY}")
    I("s_mov_b64 exec, 0xffff")
    I(f"buffer_store_short v{vY}, v{tOUT}, s[{rOUT}:{rOUT+3}], s{sOUTS} offen")
    I("s_cmp_eq_u32 s2, 15")
    I("s_cbranch_scc0 L_fin")
    I(f"s_cmp_eq_u32 s{sWAVE}, 0")
    I("s_cbranch_scc0 L_fin")
    I(f"v_mov_b32 v{vY+2}, s{sTAG}")
    I(f"v_mov_b32 v{vY+3}, {EPOCH}")
    I("s_mov_b64 exec, 1")
    I(f"global_store_dword v{vY+3}, v{vY+2}, s[{sWS}:{sWS+1}] sc1")
    G.L("L_fin")
    if trace:
        I("s_mov_b64 exec, -1")
        tr("end")
        I(f"s_lshl_b32 s{sT0}, s2, 2")
        I(f"s_add_u32 s{sT0}, s{sT0}, s{sWAVE}")
        I(f"s_lshl_b32 s{sT0}, s{sT0}, 8")
        I(f"s_add_u32 s{sT0}, s{sT0}, {STAMP_OFF}")
        I(f"v_lshlrev_b32 v{vT}, 2, v{vLANE}")
        I(f"v_add_u32 v{vT}, s{sT0}, v{vT}")
        I(f"global_store_dword v{vT}, v{vTR}, s[{sWS}:{sWS+1}]")
    if stamps:
        I("s_mov_b64 exec, -1")
        stamp(7)
        I(f"s_cmp_eq_u32 s{sWAVE}, {swave}")
        I("s_cbranch_scc0 L_end")
        if dbgwg is not None:
            for j, w in enumerate(dbgwg):
                I(f"s_cmp_eq_u32 s2, {w}")
                I(f"s_cbranch_scc0 L_dbg{j}")
                I(f"v_mov_b32 v{vT}, 0")
                I("s_mov_b64 exec, 1")
                for k in range(8):
                    I(f"v_mov_b32 v{vT+2}, s{sSTAMP+2*k}")
                    I(f"global_store_dword v{vT}, v{vT+2}, s[{sDBG}:{sDBG+1}] offset:{32*j + 4*k}")
                G.L(f"L_dbg{j}")
            I("s_endpgm")
        I(f"s_mul_i32 s{sT0}, s2, 64")
        I(f"s_add_u32 s{sT0}, s{sT0}, {STAMP_OFF}")
        I(f"v_mov_b32 v{vT}, s{sT0}")
        I("s_mov_b64 exec, 1")
        for k in range(8):
            I(f"v_mov_b32 v{vT+2}, s{sSTAMP+2*k}")
            I(f"v_mov_b32 v{vT+3}, s{sSTAMP+2*k+1}")
            I(f"global_store_dwordx2 v{vT}, v[{vT+2}:{vT+3}], s[{sWS}:{sWS+1}] offset:{8*k}")
    G.L("L_end")
    I("s_endpgm")
    G.L("L_code_end")
    return G

HEADER = open("gated_mix__gqa_block_cached__dense_activation_relu__decode.s.ref").read().split("; Override launch")[0]

def emit(path, **kw):
    G = gen(**kw)
    for p in check_async(G.lines): print("ASYNC:", p)
    body, nn = G.text()
    src = HEADER + f"""; Override launch geometry by editing the next line (default: block=256,
; grid=ceil(out_elems/256), lds=0). Harness parses it; keep it on one line.
; @launch grid=(256,1,1) block=(256,1,1) lds={LDS_BYTES}
.amdgcn_target "amdgcn-amd-amdhsa--gfx950"
.text
.globl {NAME}
.p2align 8
.type {NAME},@function
{NAME}:
{body}
.section .rodata,"a"
.p2align 6
.amdhsa_kernel {NAME}
  .amdhsa_next_free_vgpr 512
  .amdhsa_next_free_sgpr 102
  .amdhsa_accum_offset 256
  .amdhsa_group_segment_fixed_size 0
  .amdhsa_kernarg_size 96
  .amdhsa_user_sgpr_count 2
  .amdhsa_user_sgpr_kernarg_segment_ptr 1
  .amdhsa_system_sgpr_workgroup_id_x 1
.end_amdhsa_kernel
"""
    open(path, "w").write(src)
    if G.trl: open(path.replace(".s", ".labels"), "w").write("\n".join(G.trl))
    return nn

if __name__ == "__main__":
    out = sys.argv[1] if len(sys.argv) > 1 else "k.s"
    kw = eval("dict(" + (sys.argv[2] if len(sys.argv) > 2 else "") + ")")
    print("nops inserted:", emit(out, **kw))
```

```python
import sys, struct, math
from asmlib import Gen, check_async

NAME = "gated_mix__gqa_block_cached__dense_activation_relu__decode_kernel"

QOFF, HOFF, ODOFF, OSOFF, YOFF, EPOCH = 0x0, 0x10000, 0x60000, 0xE0000, 0x100000, 0xF8000
STAMP_OFF = 200 << 20
WOI, W2I = 131072, 147456
XI, RT = WOI, WOI + 4096
QI, OI, HI, MISC = 155648, 156672, 157696, 158208
M_G, M_MX, M_LS = MISC, MISC + 16, MISC + 64
LDS_BYTES = 163840
sX, sK, sV, sWQ, sWO, sBX, sW1, sW2, sGW, sOUT, sDBG, sWS = 4, 6, 8, 10, 12, 14, 16, 18, 20, 22, 24, 26
rK, rV, rW, rX, rWO, rW2, rOUT, rG = 28, 32, 36, 40, 44, 48, 56, 60
sOUTB, sBSTR, sLO, sTASK = 52, 53, 54, 55
sWAVE = 3
sGRP, sS, sB, sHKV, sC, sT0, sLDSW, sKV, sTAG, sSELLO, sSELHI, sSC = 64, 65, 66, 67, 68, 69, 70, 71, 72, 74, 75, 76
sSTR, sWA, sVB = 77, 78, 79
sSTAMP = 80
sP0, sP1, sT1, sT2 = 96, 98, 100, 101
sWT = 4
sG = 12
sF = 36
sOUTS, sWB_ = 52, 53
vLANE = 1
vTR = 0
vKD = 2
vKA = 10
vVO = 14
vA0 = 15
vT = 16
vG_, vN_ = 20, 21
vGX = 232
vS = 32
vTA = 32
vRD = 48
vPT = 64
vRING = 80
vP = 240
aACC, aQ, aKT, aV = 0, 64, 96, 160
aWO, aW2 = 64, 80
tRW, tRR, tRR2, tOD, tG1, tG2, tGS, tOI, tYS, tYG, tYG2, tOUT = range(vTA, vTA + 12)
tPO, tPY = vTA + 12, vTA + 14

def f32(x):
    return "0x%08x" % struct.unpack("<I", struct.pack("<f", x))[0]

def gen(trace=False, psleep=0, W=8, W2=None, stamps=False, code_pf=True, spin=100000, wf='nt', kfirst=2, vrole=0, winfirst=True,
        vpre=8, cover=8, vmid=12, vqk=(4, 4, 4), vpost=(2, 2, 2, 2), swave=0, spts=(1, 2, 3, 4, 5, 6, 7),
        nopoll=(), norole=False, skip_w=False, kearly=2, vearly=0, We=None, pretouch=0, pf_late=False, steer='odd', dbgwg=None, dpoll=0):
    assert kfirst <= 2
    G = Gen()
    Wc = [W]
    I, vm = G.I, G.vm
    nst = [0]
    def stamp(pt):
        if stamps and pt in spts:
            k = nst[0]; nst[0] += 1
            assert k < 8
            I(f"s_memrealtime s[{sSTAMP+2*k}:{sSTAMP+2*k+1}]")
            I("s_waitcnt lgkmcnt(0)")
    trl = []
    def tr(label):
        if trace:
            k = len(trl); trl.append(label)
            assert k < 64
            I(f"s_memrealtime s[{sP1}:{sP1+1}]")
            I("s_waitcnt lgkmcnt(0)")
            I(f"v_writelane_b32 v{vTR}, s{sP1}, {k}")
    G.trl = trl
    sPAR = 62
    nlab = [0]; par_on = [False]
    def window():
        G.window(Wc[0])
        if We and par_on[0] and We < Wc[0]:
            nlab[0] += 1
            I(f"s_cbranch_vccnz L_w{nlab[0]}")
            I(f"s_waitcnt vmcnt({We-1})")
            G.L(f"L_w{nlab[0]}")
    def set_par():
        if We: I(f"s_mov_b64 vcc, s[{sPAR}:{sPAR+1}]")
    def srd(r, p, size):
        I(f"s_mov_b32 s{r}, s{p}")
        I(f"s_and_b32 s{r+1}, s{p+1}, 0xffff")
        I(f"s_mov_b32 s{r+2}, {size}")
        I(f"s_mov_b32 s{r+3}, 0x20000")
    def xsum(v, t, op="v_add_f32"):
        I(f"v_mov_b32 v{t}, v{v}")
        I(f"v_permlane16_swap_b32 v{v}, v{t}")
        I(f"{op} v{v}, v{v}, v{t}")
        I(f"v_mov_b32 v{t}, v{v}")
        I(f"v_permlane32_swap_b32 v{v}, v{t}")
        I(f"{op} v{v}, v{v}, v{t}")
    def poll(name, reload, check):
        if name in nopoll: return
        I(f"s_mov_b32 s{sT2}, 0")
        G.L(f"L_{name}_chk")
        check()
        I(f"s_cbranch_vccz L_{name}_ok")
        I(f"s_add_u32 s{sT2}, s{sT2}, 1")
        I(f"s_cmp_gt_u32 s{sT2}, {spin}")
        I(f"s_cbranch_scc1 L_{name}_ok")
        if psleep and name in ("o", "y", "s"): I(f"s_sleep {psleep}")
        reload()
        I("s_waitcnt vmcnt(0)")
        I(f"s_branch L_{name}_chk")
        G.L(f"L_{name}_ok")
    def poll2(name, loads, nld, regsA, regsB):
        if name in nopoll: return
        dA = [r - 1 for r in regsA]; dB = [r - 1 for r in regsB]
        tagcheck(regsA)
        I(f"s_cbranch_vccz L_{name}_ok")
        I(f"s_mov_b32 s{sT2}, 0")
        loads(dA[0])
        I(f"s_sleep {dpoll}")
        loads(dB[0])
        G.L(f"L_{name}_loop")
        I(f"s_waitcnt vmcnt({nld})")
        tagcheck(regsA)
        I(f"s_cbranch_vccz L_{name}_ok")
        loads(dA[0])
        I(f"s_waitcnt vmcnt({nld})")
        tagcheck(regsB)
        I(f"s_cbranch_vccz L_{name}_okB")
        loads(dB[0])
        I(f"s_add_u32 s{sT2}, s{sT2}, 1")
        I(f"s_cmp_gt_u32 s{sT2}, {spin}")
        I(f"s_cbranch_scc0 L_{name}_loop")
        G.L(f"L_{name}_okB")
        I("s_waitcnt vmcnt(0)") if False else None
        for a_, b_ in zip(dA, dB):
            I(f"v_mov_b32 v{a_}, v{b_}   ; async-ok")
        G.L(f"L_{name}_ok")
    def tagcheck(regs):
        I(f"v_cmp_ne_u32 vcc, s{sTAG}, v{regs[0]}")
        for r in regs[1:]:
            I(f"v_cmp_ne_u32 s[{sP0}:{sP0+1}], s{sTAG}, v{r}")
            I(f"s_or_b64 vcc, vcc, s[{sP0}:{sP0+1}]")
    def img_pos(dst, row, t):
        I(f"v_lshrrev_b32 v{dst}, 5, v{row}")
        I(f"v_lshlrev_b32 v{dst}, 6, v{dst}")
        I(f"v_bfe_u32 v{t}, v{row}, 2, 2")
        I(f"v_lshl_add_u32 v{dst}, v{t}, 4, v{dst}")
        I(f"v_bfe_u32 v{t}, v{row}, 4, 1")
        I(f"v_lshl_add_u32 v{dst}, v{t}, 3, v{dst}")
        I(f"v_and_b32 v{t}, 3, v{row}")
        I(f"v_lshl_add_u32 v{dst}, v{t}, 1, v{dst}")
    def keep_group(base, stride):
        for k, (lo, hi) in ((1, ("0xffff0000", "0")), (2, ("0", "0xffff")), (3, ("0", "0xffff0000"))):
            I(f"s_mov_b32 exec_lo, {lo}")
            I(f"s_mov_b32 exec_hi, {hi}")
            for r in range(stride):
                I(f"v_mov_b32 v{base+r}, v{base+stride*k+r}")
        I("s_mov_b64 exec, -1")
    def wimg_src(dst, stride_sreg_or_imm, t0, t1):
        I(f"v_lshrrev_b32 v{t0}, 3, v{vLANE}")
        I(f"v_and_b32 v{t1}, 6, v{t0}")
        I(f"v_and_b32 v{dst}, 7, v{vLANE}")
        I(f"v_xor_b32 v{t1}, v{t1}, v{dst}")
        if isinstance(stride_sreg_or_imm, str): I(f"v_mul_lo_u32 v{t0}, v{t0}, {stride_sreg_or_imm}")
        else: I(f"v_mul_u32_u24 v{t0}, {stride_sreg_or_imm}, v{t0}")
        I(f"v_lshl_add_u32 v{dst}, v{t1}, 4, v{t0}")
    def wimg_rd(dst, t0, t1):
        I(f"v_lshrrev_b32 v{t0}, 2, v{vLANE}")
        I(f"v_and_b32 v{dst}, 6, v{t0}")
        I(f"v_bfe_u32 v{t1}, v{vLANE}, 1, 1")
        I(f"v_xor_b32 v{dst}, v{dst}, v{t1}")
        I(f"v_lshlrev_b32 v{dst}, 4, v{dst}")
        I(f"v_lshl_or_b32 v{dst}, v{t0}, 7, v{dst}")
        I(f"v_and_b32 v{t1}, 1, v{vLANE}")
        I(f"v_lshl_or_b32 v{dst}, v{t1}, 3, v{dst}")

    if stamps:
        I(f"s_memrealtime s[{sSTAMP}:{sSTAMP+1}]"); nst[0] = 1
        for k in range(1, 8): I(f"s_mov_b64 s[{sSTAMP+2*k}:{sSTAMP+2*k+1}], 0")
    I("s_cmp_ge_u32 s2, 256")
    I("s_cbranch_scc1 L_end")
    I("s_load_dwordx16 s[4:19], s[0:1], 0")
    I("s_load_dwordx8 s[20:27], s[0:1], 64")
    I(f"v_lshrrev_b32 v{vT}, 6, v0")
    I(f"v_and_b32 v{vLANE}, 63, v0")
    I(f"v_readfirstlane_b32 s{sWAVE}, v{vT}")
    if trace:
        I("s_waitcnt lgkmcnt(0)")
        I(f"v_mov_b32 v{vTR}, 0")
        tr("entry")
    def code_prefetch():
        if code_pf:
            I(f"s_cmp_eq_u32 s{sWAVE}, 3")
            I("s_cbranch_scc0 L_nopf")
            I(f"s_getpc_b64 s[{sP0}:{sP0+1}]")
            G.L("L_pc")
            I(f"s_sub_u32 s{sP0}, s{sP0}, L_pc-{NAME}")
            I(f"s_subb_u32 s{sP0+1}, s{sP0+1}, 0")
            I(f"v_lshlrev_b32 v{vT+1}, 7, v{vLANE}")
            for k in range(2):
                I(f"v_min_u32 v{vT+2}, L_code_end-{NAME}-4, v{vT+1}")
                I(f"global_load_dword v{vP+15}, v{vT+2}, s[{sP0}:{sP0+1}]")
                if k < 1: I(f"v_add_u32 v{vT+1}, 0x2000, v{vT+1}")
            G.L("L_nopf")
    if not pf_late: code_prefetch()
    I(f"s_lshr_b32 s{sGRP}, s2, 3")
    I(f"s_and_b32 s{sS}, s2, 7")
    I(f"s_lshr_b32 s{sB}, s{sGRP}, 3")
    I(f"s_and_b32 s{sHKV}, s{sGRP}, 7")
    I(f"s_add_u32 s{sC}, s{sS}, s{sHKV}")
    I(f"s_and_b32 s{sC}, s{sC}, 7")
    I(f"s_lshl_b32 s{sLDSW}, s{sWAVE}, 15")
    I(f"s_lshl_b32 s{sKV}, s{sGRP}, 21")
    I(f"s_lshl_b32 s{sT0}, s{sC}, 18")
    I(f"s_add_u32 s{sKV}, s{sKV}, s{sT0}")
    I(f"s_lshl_b32 s{sT0}, s{sWAVE}, 13")
    I(f"s_add_u32 s{sKV}, s{sKV}, s{sT0}")
    I(f"v_lshrrev_b32 v{vT}, 5, v{vLANE}")
    I(f"v_and_b32 v{vT+1}, 31, v{vLANE}")
    I(f"v_lshlrev_b32 v{vT+2}, 2, v{vT}")
    I(f"v_xor_b32 v{vT+1}, v{vT+1}, v{vT+2}")
    I(f"v_lshlrev_b32 v{vT+1}, 4, v{vT+1}")
    I(f"v_lshl_or_b32 v{vKD}, v{vT}, 9, v{vT+1}")
    for i in range(1, 8):
        I(f"v_xor_b32 v{vKD+i}, {(8*(i&1) + (i>>1)) << 4}, v{vKD}")
    I(f"v_lshrrev_b32 v{vG_}, 4, v{vLANE}")
    I(f"v_and_b32 v{vN_}, 15, v{vLANE}")
    I("s_waitcnt lgkmcnt(0)")
    srd(rK, sK, 0x4000000)
    kidx = {}
    def k_tile(t, win=True):
        tr(f"K{t}")
        I(f"s_add_u32 s{sT0}, s{sKV}, {t*32768}")
        for i in range(8):
            if i % 4 == 0:
                if i == 4: I(f"s_add_u32 s{sT0}, s{sT0}, 4096")
                I(f"s_add_u32 m0, s{sLDSW}, {(t & 3)*8192 + (i>>2)*4096}")
            if win: window()
            kidx[t] = vm(f"buffer_load_dwordx4 v{vKD+i}, s[{rK}:{rK+3}], s{sT0} offen offset:{(i&3)*1024} nt lds")
    vidx = {}
    def v_reg(j):
        return ("a", aV + 4*j) if j < 24 else ("v", vRING + 4*(j-24))
    vcur = [None]; vnext = [0]
    def v_loads(n, win=True):
        for _ in range(min(n, 64 - vnext[0])):
            j = vnext[0]; vnext[0] += 1
            if j % 4 == 0: tr(f"V{j}")
            beta, h, tp, r = j >> 4, (j >> 3) & 1, (j >> 2) & 1, j & 3
            base = (2*beta + tp)*32768 + (r >> 1)*4096
            if vcur[0] != base:
                I(f"s_add_u32 s{sVB}, s{sKV}, {base}")
                vcur[0] = base
            if win: window()
            f, b0 = v_reg(j)
            vidx[j] = vm(f"buffer_load_dwordx4 {f}[{b0}:{b0+3}], v{vVO}, s[{rV}:{rV+3}], s{sVB} offen offset:{(r&1)*2048 + h*256} nt")
    for t in range(kearly): k_tile(t, win=False)
    srd(rV, sV, 0x4000000)
    I(f"v_lshlrev_b32 v{vVO}, 9, v{vG_}")
    I(f"v_lshl_or_b32 v{vVO}, v{vN_}, 4, v{vVO}")
    v_loads(vearly, win=False)
    if pf_late: code_prefetch()
    I(f"s_load_dword s{sTAG}, s[{sWS}:{sWS+1}], {EPOCH}")
    I(f"s_mov_b32 s{sTASK}, 0")
    if norole: I("s_branch L_roleDone")
    I(f"s_and_b32 s{sT0}, s{sS}, 1")
    I(f"s_cmp_eq_u32 s{sT0}, 0")
    I("s_cbranch_scc0 L_gateLoads")
    I(f"s_lshl_b32 s{sT0}, s{sHKV}, 2")
    I(f"s_lshr_b32 s{sT1}, s{sS}, 1")
    I(f"s_add_u32 s{sT0}, s{sT0}, s{sT1}")
    I(f"s_cmp_lt_u32 s{sT0}, 23")
    I("s_cbranch_scc0 L_gateLoads")
    I(f"s_mul_i32 s{sT1}, s{sB}, 23")
    I(f"s_add_u32 s{sT0}, s{sT0}, s{sT1}")
    I(f"s_cmp_lt_u32 s{sT0}, 64")
    I("s_cbranch_scc1 L_roleQ")
    I(f"s_sub_u32 s{sT0}, s{sT0}, 64")
    I(f"s_lshl_b32 s{sT1}, s{sT0}, 7")
    I(f"s_add_u32 s{rW}, s{sW1}, s{sT1}")
    I(f"s_addc_u32 s{rW+1}, s{sW1+1}, 0")
    I(f"s_sub_u32 s{rW+2}, {448*3584}, s{sT1}")
    I(f"s_movk_i32 s{sSTR}, 3584")
    I(f"s_lshl_b32 s{sOUTB}, s{sT0}, 8")
    I(f"s_add_u32 s{sOUTB}, s{sOUTB}, {HOFF}")
    I(f"s_movk_i32 s{sBSTR}, 7168")
    I(f"s_mov_b32 s{sLO}, 0")
    I("s_branch L_taskLoads")
    G.L("L_roleQ")
    I(f"s_lshl_b32 s{sT1}, s{sT0}, 7")
    I(f"s_add_u32 s{rW}, s{sWQ}, s{sT1}")
    I(f"s_addc_u32 s{rW+1}, s{sWQ+1}, 0")
    I(f"s_sub_u32 s{rW+2}, {448*8192}, s{sT1}")
    I(f"s_movk_i32 s{sSTR}, 8192")
    I(f"s_lshr_b32 s{sT1}, s{sT0}, 3")
    I(f"s_lshl_b32 s{sOUTB}, s{sT1}, 13")
    I(f"s_and_b32 s{sT1}, s{sT0}, 7")
    I(f"s_lshl_b32 s{sT1}, s{sT1}, 8")
    I(f"s_add_u32 s{sOUTB}, s{sOUTB}, s{sT1}")
    I(f"s_movk_i32 s{sBSTR}, 2048")
    I(f"s_mov_b32 s{sLO}, 0xff800000")
    G.L("L_taskLoads")
    I(f"s_and_b32 s{rW+1}, s{rW+1}, 0xffff")
    I(f"s_mov_b32 s{rW+3}, 0x20000")
    srd(rX, sX, 3584)
    I(f"v_mul_u32_u24 v{vT}, 896, v{vG_}")
    I(f"v_lshl_add_u32 v{vT}, v{vN_}, 4, v{vT}")
    I(f"s_lshl_b32 s{sT0}, s{sWAVE}, 8")
    I(f"s_lshl_b32 s{sT1}, s{sWAVE}, 10")
    I(f"s_add_u32 m0, s{sT1}, {XI}")
    wimg_src(vT+1, f"s{sSTR}", vT+2, vT+3)
    I(f"buffer_load_dwordx4 v{vT}, s[{rX}:{rX+3}], s{sT0} offen {wf} lds")
    I(f"s_lshl_b32 s{sT1}, s{sSTR}, 3")
    I(f"s_lshl_b32 s{sT0}, s{sWAVE}, 7")
    I(f"s_mul_i32 s{sT0}, s{sT0}, s{sSTR}")
    for i in range(16):
        I(f"s_add_u32 m0, s{sLDSW}, {16384 + i*1024}")
        if i: I(f"s_add_u32 s{sT0}, s{sT0}, s{sT1}")
        I(f"buffer_load_dwordx4 v{vT+1}, s[{rW}:{rW+3}], s{sT0} offen {wf} lds")
    I(f"s_mov_b32 s{sTASK}, 1")
    G.L("L_gateLoads")
    srd(rG, sGW, 896)
    I(f"s_mul_i32 s{sT0}, s{sWAVE}, 896")
    I(f"s_add_u32 s{rX}, s{sX}, s{sT0}")
    I(f"s_addc_u32 s{rX+1}, s{sX+1}, 0")
    I(f"s_and_b32 s{rX+1}, s{rX+1}, 0xffff")
    I(f"s_mov_b32 s{rX+2}, 896")
    I(f"s_mov_b32 s{rX+3}, 0x20000")
    I(f"v_lshlrev_b32 v{vT}, 4, v{vLANE}")
    I(f"buffer_load_dwordx4 v[{vGX}:{vGX+3}], v{vT}, s[{rX}:{rX+3}], 0 offen {wf}")
    I(f"buffer_load_dwordx4 v[{vGX+4}:{vGX+7}], v{vT}, s[{rG}:{rG+3}], 0 offen {wf}")
    G.L("L_roleDone")
    role_mark = G.vm_n; G.vm_bound += 21
    for t in range(kearly, kfirst): k_tile(t, win=winfirst)
    v_loads(vrole, win=winfirst)
    I(f"v_and_b32 v{vT+6}, 3, v{vN_}")
    I(f"v_lshrrev_b32 v{vT+7}, 2, v{vN_}")
    I(f"v_lshl_or_b32 v{vT+6}, v{vT+6}, 2, v{vT+7}")
    I(f"v_xor_b32 v{vT+7}, v{vG_}, v{vN_}")
    I(f"v_lshlrev_b32 v{vT+7}, 4, v{vT+7}")
    I(f"v_lshl_or_b32 v{vT+6}, v{vT+6}, 9, v{vT+7}")
    I(f"v_add_u32 v{vKA}, s{sLDSW}, v{vT+6}")
    for j in range(1, 4):
        I(f"v_xor_b32 v{vKA+j}, {j << 6}, v{vKA}")
    I(f"s_mov_b32 s{sSELLO}, 0x05040100")
    I(f"s_mov_b32 s{sSELHI}, 0x07060302")
    I(f"s_mov_b32 s{sSC}, {f32(math.log2(math.e)/16.0)}")
    I(f"s_cmp_eq_u32 s{sC}, 7")
    I(f"s_cselect_b32 s{sT1}, 0, {4096*896}")
    I(f"s_cselect_b32 s{sT2}, 0, {1792*896}")
    I(f"s_mov_b32 s{rWO}, s{sWO}")
    I(f"s_and_b32 s{rWO+1}, s{sWO+1}, 0xffff")
    I(f"s_mov_b32 s{rWO+2}, s{sT1}")
    I(f"s_mov_b32 s{rWO+3}, 0x20000")
    I(f"s_mov_b32 s{rW2}, s{sW2}")
    I(f"s_and_b32 s{rW2+1}, s{sW2+1}, 0xffff")
    I(f"s_mov_b32 s{rW2+2}, s{sT2}")
    I(f"s_mov_b32 s{rW2+3}, 0x20000")
    srd(rOUT, sOUT, 3584)
    I("s_waitcnt lgkmcnt(0)")
    I(f"s_add_u32 s{sTAG}, s{sTAG}, 1")
    I(f"s_waitcnt vmcnt({G.vm_n - role_mark})")
    stamp(10)
    tr("role_landed")
    I(f"s_cmp_eq_u32 s{sTASK}, 0")
    I("s_cbranch_scc1 L_taskEnd")
    vA, vB, vC = vRING, vRING + 16, vRING + 80
    I(f"v_and_b32 v{vT}, 3, v{vLANE}")
    I(f"v_lshlrev_b32 v{vT}, 8, v{vT}")
    I(f"v_lshl_add_u32 v{vT}, v{vG_}, 3, v{vT}")
    I(f"s_lshl_b32 s{sT1}, s{sWAVE}, 10")
    I(f"s_add_u32 s{sT1}, s{sT1}, {XI}")
    I(f"v_add_u32 v{vT}, s{sT1}, v{vT}")
    wimg_rd(vT+8, vT+1, vT+2)
    I(f"s_add_u32 s{sT1}, s{sLDSW}, 16384")
    I(f"v_add_u32 v{vT+8}, s{sT1}, v{vT+8}")
    for ct in range(1, 4):
        I(f"v_xor_b32 v{vT+8+ct}, {ct << 5}, v{vT+8}")
    for s_ in range(4):
        I(f"ds_read_b64 v[{vA+4*s_}:{vA+4*s_+1}], v{vT} offset:{s_*64}")
        I(f"ds_read_b64 v[{vA+4*s_+2}:{vA+4*s_+3}], v{vT} offset:{s_*64+32}")
    def b_reads(s_):
        for ct in range(4):
            d = vB + 16*s_ + 4*ct
            I(f"ds_read_b64_tr_b16 v[{d}:{d+1}], v{vT+8+ct} offset:{s_*4096}")
            I(f"ds_read_b64_tr_b16 v[{d+2}:{d+3}], v{vT+8+ct} offset:{s_*4096+2048}")
    I("s_waitcnt lgkmcnt(7)")
    b_reads(0)
    for s_ in range(4):
        if s_ < 3:
            I("s_waitcnt lgkmcnt(7)")
            b_reads(s_ + 1)
            I("s_waitcnt lgkmcnt(8)")
        else:
            I("s_waitcnt lgkmcnt(0)")
        for ct in range(4):
            d = vB + 16*s_ + 4*ct
            c = "0" if s_ == 0 else f"v[{vC+4*ct}:{vC+4*ct+3}]"
            I(f"v_mfma_f32_16x16x32_bf16 v[{vC+4*ct}:{vC+4*ct+3}], v[{vA+4*s_}:{vA+4*s_+3}], v[{d}:{d+3}], {c}")
    I(f"s_lshl_b32 s{sT1}, s{sWAVE}, 10")
    I(f"s_add_u32 s{sT1}, s{sT1}, {RT}")
    I(f"v_lshlrev_b32 v{vT+2}, 2, v{vLANE}")
    I(f"v_add_u32 v{vT+3}, s{sT1}, v{vT+2}")
    keep_group(vC, 4)
    for r in range(4):
        I(f"ds_write_b32 v{vT+3}, v{vC+r} offset:{r*256}")
    I(f"s_lshl_b32 s{sT1}, s{sWAVE}, 8")
    I(f"s_add_u32 s{sT1}, s{sT1}, {RT}")
    I(f"v_add_u32 v{vT+3}, s{sT1}, v{vT+2}")
    I(f"s_mul_i32 s{sT1}, s{sWAVE}, s{sBSTR}")
    I(f"s_add_u32 s{sT1}, s{sT1}, s{sOUTB}")
    I(f"v_add_u32 v{vT+2}, s{sT1}, v{vT+2}")
    I(f"v_mov_b32 v{vT+13}, s{sTAG}")
    I("s_waitcnt lgkmcnt(0)")
    I("s_barrier")
    for w in range(4):
        I(f"ds_read_b32 v{vC+w}, v{vT+3} offset:{w*1024}")
    I("s_waitcnt lgkmcnt(0)")
    I(f"v_add_f32 v{vC}, v{vC}, v{vC+1}")
    I(f"v_add_f32 v{vC+2}, v{vC+2}, v{vC+3}")
    I(f"v_add_f32 v{vC}, v{vC}, v{vC+2}")
    I(f"v_max_f32 v{vC}, s{sLO}, v{vC}")
    I(f"v_mov_b32_dpp v{vC+1}, v{vC} quad_perm:[1,0,3,2] row_mask:0xf bank_mask:0xf")
    I(f"v_cvt_pk_bf16_f32 v{vT+12}, v{vC}, v{vC+1}")
    I("s_mov_b32 exec_lo, 0x55555555")
    I("s_mov_b32 exec_hi, 0x55555555")
    I(f"global_store_dwordx2 v{vT+2}, v[{vT+12}:{vT+13}], s[{sWS}:{sWS+1}] sc1")
    I("s_mov_b64 exec, -1")
    G.L("L_taskEnd")
    xa, ga = vGX, vGX + 4
    I(f"v_mov_b32 v{vT}, 0")
    for j in range(4):
        I(f"v_lshlrev_b32 v{vT+1}, 16, v{xa+j}")
        I(f"v_lshlrev_b32 v{vT+2}, 16, v{ga+j}")
        I(f"v_and_b32 v{vT+3}, 0xffff0000, v{xa+j}")
        I(f"v_and_b32 v{vT+8}, 0xffff0000, v{ga+j}")
        I(f"v_fmac_f32 v{vT}, v{vT+1}, v{vT+2}")
        I(f"v_fmac_f32 v{vT}, v{vT+3}, v{vT+8}")
    for ror in (8, 4, 2, 1):
        I(f"v_add_f32_dpp v{vT}, v{vT}, v{vT} row_ror:{ror} row_mask:0xf bank_mask:0xf")
    xsum(vT, vT+1)
    I(f"v_mul_f32 v{vT}, {f32(-math.log2(math.e))}, v{vT}")
    I(f"v_exp_f32 v{vT}, v{vT}")
    I(f"v_add_f32 v{vT}, 1.0, v{vT}")
    I(f"v_rcp_f32 v{vT}, v{vT}")
    I(f"s_lshl_b32 s{sT1}, s{sWAVE}, 2")
    I(f"s_add_u32 s{sT1}, s{sT1}, {M_G}")
    I(f"v_mov_b32 v{vT+1}, s{sT1}")
    I(f"ds_write_b32 v{vT+1}, v{vT}")
    stamp(1)
    I("s_waitcnt lgkmcnt(0)") if trace else None
    tr("role_done")
    G.vm_bound = G.vm_n - role_mark + 1
    if We:
        if steer == 'odd':
            I(f"s_and_b32 s{sT0}, s{sS}, 1")
            I(f"s_cmp_eq_u32 s{sT0}, 1")
        else:
            I(f"s_cmp_eq_u32 s{sTASK}, 1")
        I(f"s_cselect_b64 s[{sPAR}:{sPAR+1}], -1, 0")
        par_on[0] = True
        set_par()
    for t in range(kfirst, 4): k_tile(t)
    v_loads(vpre)
    I(f"s_lshl_b32 s{sT0}, s{sHKV}, 2")
    I(f"s_add_u32 s{sT0}, s{sT0}, s{sB}")
    I(f"s_lshl_b32 s{sT0}, s{sT0}, 11")
    I(f"s_lshl_b32 s{sT1}, s{sWAVE}, 9")
    I(f"s_add_u32 s{sT0}, s{sT0}, s{sT1}")
    I(f"v_lshlrev_b32 v{vA0}, 3, v{vLANE}")
    I(f"v_add_u32 v{vA0}, s{sT0}, v{vA0}")
    vq = vS
    qload = f"global_load_dwordx2 v[{vq}:{vq+1}], v{vA0}, s[{sWS}:{sWS+1}] sc1"
    window()
    stamp(11)
    tr("q_issue")
    qg = vm(qload)
    v_loads(cover)
    I(f"s_lshl_b32 s{sT1}, s{sWAVE}, 8")
    I(f"s_add_u32 s{sT1}, s{sT1}, {QI}")
    I(f"v_lshlrev_b32 v{vT}, 2, v{vLANE}")
    I(f"v_add_u32 v{vT}, s{sT1}, v{vT}")
    I(f"v_and_b32 v{vT+1}, 1, v{vLANE}")
    I(f"v_lshlrev_b32 v{vT+1}, 9, v{vT+1}")
    I(f"v_lshl_add_u32 v{vT+1}, v{vG_}, 4, v{vT+1}")
    I(f"v_add_u32 v{vT+1}, {QI}, v{vT+1}")
    G.vm_wait(qg)
    poll("q", lambda: I(qload), lambda: tagcheck([vq+1]))
    stamp(2)
    tr("q_ok")
    if W2: Wc[0] = W2
    set_par()
    I(f"ds_write_b32 v{vT}, v{vq}")
    I("s_waitcnt lgkmcnt(0)")
    I("s_barrier")
    for s_ in range(8):
        I(f"ds_read_b128 a[{aQ+4*s_}:{aQ+4*s_+3}], v{vT+1} offset:{s_*64}")
    def k_reads(t):
        for s in range(8):
            d = aKT + 32*(t & 1) + 4*s
            I(f"ds_read_b128 a[{d}:{d+3}], v{vKA + (s & 3)} offset:{(t & 3)*8192 + (s >> 2)*256}")
    def qk_mfma(t):
        for s in range(8):
            d = aKT + 32*(t & 1) + 4*s
            c = "0" if s == 0 else f"v[{vS+4*t}:{vS+4*t+3}]"
            I(f"v_mfma_f32_16x16x32_bf16 v[{vS+4*t}:{vS+4*t+3}], a[{d}:{d+3}], a[{aQ+4*s}:{aQ+4*s+3}], {c}")
    vWD = vA0
    wimg_src(vWD, 896, vT+6, vT+7)
    I(f"s_lshl_b32 s{sWA}, s{sHKV}, 9")
    I(f"s_lshl_b32 s{sT1}, s{sB}, 7")
    I(f"s_add_u32 s{sWA}, s{sWA}, s{sT1}")
    I(f"s_lshl_b32 s{sT1}, s{sWAVE}, 5")
    I(f"s_add_u32 s{sWA}, s{sWA}, s{sT1}")
    I(f"s_mul_i32 s{sWA}, s{sWA}, 896")
    I(f"s_lshl_b32 s{sT2}, s{sC}, 7")
    I(f"s_add_u32 s{sWA}, s{sWA}, s{sT2}")
    I(f"s_mul_i32 s{sWB_}, s{sHKV}, 224")
    I(f"s_mul_i32 s{sT1}, s{sB}, 56")
    I(f"s_add_u32 s{sWB_}, s{sWB_}, s{sT1}")
    I(f"s_lshl_b32 s{sT1}, s{sWAVE}, 4")
    I(f"s_add_u32 s{sWB_}, s{sWB_}, s{sT1}")
    I(f"s_mul_i32 s{sWB_}, s{sWB_}, 896")
    I(f"s_add_u32 s{sWB_}, s{sWB_}, s{sT2}")
    wnext = [0]; wl = [G.vm_n - 1]
    def w_loads(n):
        for _ in range(min(n, 6 - wnext[0])):
            i = wnext[0]; wnext[0] += 1
            if skip_w: continue
            if i < 4:
                I(f"s_lshl_b32 s{sT1}, s{sWAVE}, 12")
                I(f"s_add_u32 m0, s{sT1}, {WOI + i*1024}")
                if i: I(f"s_add_u32 s{sWA}, s{sWA}, {8*896}")
                window()
                wl[0] = vm(f"buffer_load_dwordx4 v{vWD}, s[{rWO}:{rWO+3}], s{sWA} offen {wf} lds")
            else:
                k = i - 4
                I(f"s_lshl_b32 s{sT1}, s{sWAVE}, 11")
                I(f"s_add_u32 m0, s{sT1}, {W2I + k*1024}")
                if k: I(f"s_add_u32 s{sWB_}, s{sWB_}, {8*896}")
                window()
                wl[0] = vm(f"buffer_load_dwordx4 v{vWD}, s[{rW2}:{rW2+3}], s{sWB_} offen {wf} lds")
    I("s_waitcnt lgkmcnt(0)")
    k_reads(0)
    for t in range(4):
        I("s_waitcnt lgkmcnt(0)")
        if t < 3: k_reads(t + 1)
        k_tile(t + 4)
        qk_mfma(t)
    w_loads(6)
    vH, vHA = vT + 8, vT + 6
    I(f"s_mul_i32 s{sT0}, s{sWAVE}, 896")
    I(f"s_mul_i32 s{sT1}, s{sHKV}, 112")
    I(f"s_add_u32 s{sT0}, s{sT0}, s{sT1}")
    I(f"s_mul_i32 s{sT1}, s{sB}, 28")
    I(f"s_add_u32 s{sT0}, s{sT0}, s{sT1}")
    I(f"s_lshl_b32 s{sT0}, s{sT0}, 3")
    I(f"s_add_u32 s{sT0}, s{sT0}, {HOFF}")
    I(f"v_min_u32 v{vHA}, 27, v{vLANE}")
    I(f"v_lshlrev_b32 v{vHA}, 3, v{vHA}")
    I(f"v_add_u32 v{vHA}, s{sT0}, v{vHA}")
    hload = f"global_load_dwordx2 v[{vH}:{vH+1}], v{vHA}, s[{sWS}:{sWS+1}] sc1"
    hg = vm(hload)
    v_loads(vmid)
    G.vm_wait(kidx[4])
    k_reads(4)
    for t in range(4, 8):
        I("s_waitcnt lgkmcnt(0)")
        if t < 7:
            G.vm_wait(kidx[t + 1])
            k_reads(t + 1)
        qk_mfma(t)
        if t < 7: v_loads(vqk[t - 4])
    stamp(3)
    tr("qk_done")
    G.vm_wait(hg)
    I("s_mov_b64 exec, 0xfffffff")
    poll("h", lambda: I(hload), lambda: tagcheck([vH+1]))
    I("s_mov_b64 exec, -1")
    I(f"v_cmp_gt_u32 vcc, 28, v{vLANE}")
    I(f"v_lshlrev_b32 v{vT+6}, 1, v{vLANE}")
    I(f"v_cndmask_b32 v{vH}, 0, v{vH}, vcc")
    img_pos(vT+7, vT+6, vT+2)
    I(f"s_lshl_b32 s{sT1}, s{sWAVE}, 7")
    I(f"s_add_u32 s{sT1}, s{sT1}, {HI}")
    I(f"v_add_u32 v{vT+7}, s{sT1}, v{vT+7}")
    I("s_mov_b32 exec_hi, 0")
    I(f"ds_write_b32 v{vT+7}, v{vH}")
    I("s_mov_b64 exec, -1")
    set_par()
    vM, vL = vT, vT + 1
    I(f"v_max3_f32 v{vM}, v{vS}, v{vS+1}, v{vS+2}")
    for k in range(3, 31, 2):
        I(f"v_max3_f32 v{vM}, v{vM}, v{vS+k}, v{vS+k+1}")
    I(f"v_max_f32 v{vM}, v{vM}, v{vS+31}")
    xsum(vM, vT+6, "v_max_f32")
    I(f"v_mul_f32 v{vM}, s{sSC}, v{vM}")
    for k in range(32):
        I(f"v_fma_f32 v{vS+k}, v{vS+k}, s{sSC}, -v{vM}")
    for k in range(32):
        I(f"v_exp_f32 v{vS+k}, v{vS+k}")
    I(f"v_add_f32 v{vL}, v{vS}, v{vS+1}")
    for k in range(2, 32):
        I(f"v_add_f32 v{vL}, v{vL}, v{vS+k}")
    for k in range(16):
        I(f"v_cvt_pk_bf16_f32 v{vP+k}, v{vS+2*k}, v{vS+2*k+1}")
    xsum(vL, vT+6)
    I(f"v_and_b32 v{vT+2}, 1, v{vLANE}")
    I(f"v_lshlrev_b32 v{vT+2}, 4, v{vT+2}")
    I(f"v_add_u32 v{vT+2}, {MISC}, v{vT+2}")
    I(f"s_lshl_b32 s{sT1}, s{sWAVE}, 2")
    I(f"v_add_u32 v{vT+3}, s{sT1}, v{vT+2}")
    I(f"ds_write_b32 v{vT+3}, v{vM} offset:{M_MX - MISC}")
    I(f"ds_write_b32 v{vT+3}, v{vL} offset:{M_LS - MISC}")
    v_loads(vpost[0])
    I(f"v_lshlrev_b32 v{tRW}, 3, v{vN_}")
    I(f"v_add_u32 v{tRW}, s{sLDSW}, v{tRW}")
    I(f"v_and_b32 v{vT+6}, 3, v{vLANE}")
    I(f"v_lshlrev_b32 v{vT+6}, 8, v{vT+6}")
    I(f"v_lshrrev_b32 v{vT+7}, 2, v{vLANE}")
    I(f"v_lshl_add_u32 v{vT+6}, v{vT+7}, 3, v{vT+6}")
    I(f"s_and_b32 s{sT1}, s{sWAVE}, 1")
    I(f"s_lshl_b32 s{sT1}, s{sT1}, 10")
    I(f"s_lshr_b32 s{sT2}, s{sWAVE}, 1")
    I(f"s_lshl_b32 s{sT2}, s{sT2}, 2")
    I(f"s_add_u32 s{sT1}, s{sT1}, s{sT2}")
    I(f"v_add_u32 v{tRR}, s{sT1}, v{vT+6}")
    I(f"v_add_u32 v{tRR2}, 65536, v{tRR}")
    I(f"s_lshl_b32 s{sT1}, s{sWAVE}, 9")
    I(f"v_lshlrev_b32 v{vT+6}, 3, v{vLANE}")
    I(f"v_add_u32 v{vT+6}, s{sT1}, v{vT+6}")
    I(f"s_lshl_b32 s{sT0}, s2, 11")
    I(f"s_add_u32 s{sT0}, s{sT0}, {ODOFF}")
    I(f"v_add_u32 v{tOD}, s{sT0}, v{vT+6}")
    I(f"s_lshl_b32 s{sT0}, s{sWAVE}, 3")
    I(f"s_add_u32 s{sT0}, s{sT0}, s{sHKV}")
    I(f"s_lshl_b32 s{sT1}, s{sT0}, 14")
    I(f"s_lshl_b32 s{sT2}, s{sB}, 9")
    I(f"s_add_u32 s{sT1}, s{sT1}, s{sT2}")
    I(f"s_add_u32 s{sT1}, s{sT1}, {ODOFF + 0x1000}")
    I(f"v_lshlrev_b32 v{vT+6}, 3, v{vLANE}")
    I(f"v_add_u32 v{tG1}, s{sT1}, v{vT+6}")
    I(f"v_add_u32 v{tG2}, 0x2000, v{tG1}")
    I(f"s_lshl_b32 s{sT0}, s{sT0}, 8")
    I(f"s_add_u32 s{sT0}, s{sT0}, {OSOFF}")
    I(f"v_and_b32 v{vT+6}, 31, v{vLANE}")
    I(f"v_lshlrev_b32 v{vT+6}, 3, v{vT+6}")
    I(f"v_add_u32 v{tGS}, s{sT0}, v{vT+6}")
    I(f"v_lshlrev_b32 v{vT+7}, 1, v{vLANE}")
    img_pos(tOI, vT+7, vT+6)
    I(f"s_lshl_b32 s{sT1}, s{sWAVE}, 8")
    I(f"s_add_u32 s{sT1}, s{sT1}, {OI}")
    I(f"v_add_u32 v{tOI}, s{sT1}, v{tOI}")
    I(f"s_lshl_b32 s{sT0}, s{sC}, 14")
    I(f"s_lshl_b32 s{sT1}, s{sWAVE}, 7")
    I(f"s_add_u32 s{sT0}, s{sT0}, s{sT1}")
    I(f"s_add_u32 s{sT0}, s{sT0}, {YOFF}")
    I(f"v_lshlrev_b32 v{vT+6}, 3, v{vN_}")
    I(f"v_add_u32 v{vT+6}, s{sT0}, v{vT+6}")
    I(f"s_lshl_b32 s{sT1}, s{sHKV}, 2")
    I(f"s_add_u32 s{sT1}, s{sT1}, s{sB}")
    I(f"s_lshl_b32 s{sT1}, s{sT1}, 9")
    I(f"v_lshl_add_u32 v{tYS}, v{vG_}, 17, v{vT+6}")
    I(f"v_add_u32 v{tYS}, s{sT1}, v{tYS}")
    I(f"s_lshl_b32 s{sT1}, s{sB}, 17")
    I(f"s_add_u32 s{sT1}, s{sT1}, 0x1000")
    I(f"v_lshl_add_u32 v{tYG}, v{vG_}, 9, v{vT+6}")
    I(f"v_add_u32 v{tYG}, s{sT1}, v{tYG}")
    I(f"v_add_u32 v{tYG2}, 0x2000, v{tYG}")
    I(f"v_lshlrev_b32 v{tOUT}, 1, v{vN_}")
    I(f"v_mov_b32 v{tPO+1}, s{sTAG}")
    I(f"v_mov_b32 v{tPY+1}, s{sTAG}")
    I(f"s_mul_i32 s{sOUTS}, s{sB}, 896")
    I(f"s_lshl_b32 s{sT1}, s{sC}, 7")
    I(f"s_add_u32 s{sOUTS}, s{sOUTS}, s{sT1}")
    I(f"s_lshl_b32 s{sT1}, s{sWAVE}, 5")
    I(f"s_add_u32 s{sOUTS}, s{sOUTS}, s{sT1}")
    vWB = vT + 9
    wimg_rd(vWB, vT+6, vT+7)
    I(f"s_lshl_b32 s{sT1}, s{sWAVE}, 5")
    I(f"v_xor_b32 v{vWB}, s{sT1}, v{vWB}")
    I(f"v_add_u32 v{vWB+1}, {W2I}, v{vWB}")
    I(f"v_add_u32 v{vWB}, {WOI}, v{vWB}")
    I(f"v_and_b32 v{vT+7}, 3, v{vLANE}")
    I(f"v_lshlrev_b32 v{vWB+2}, 8, v{vT+7}")
    I(f"v_lshl_add_u32 v{vWB+2}, v{vG_}, 4, v{vWB+2}")
    I(f"v_add_u32 v{vWB+2}, {OI}, v{vWB+2}")
    vHB = vT + 6
    I(f"v_lshlrev_b32 v{vHB}, 7, v{vT+7}")
    I(f"v_lshl_add_u32 v{vHB}, v{vG_}, 4, v{vHB}")
    I(f"v_add_u32 v{vHB}, {HI}, v{vHB}")
    if pretouch:
        vD = vKD
        I(f"s_cmp_eq_u32 s{sC}, 7")
        I("s_cbranch_scc1 L_nopt")
        I(f"global_load_dwordx2 v[{vD}:{vD+1}], v{tGS}, s[{sWS}:{sWS+1}] sc1")
        for k in range(8):
            a = tG1 if k < 4 else tG2
            I(f"global_load_dwordx2 v[{vD}:{vD+1}], v{a}, s[{sWS}:{sWS+1}] offset:{(k & 3)*2048 - 4096} sc1")
        if pretouch > 1:
            I(f"s_sub_u32 s{sT1}, 7, s{sB}")
            I(f"s_cmp_eq_u32 s{sS}, s{sT1}")
            I("s_cbranch_scc0 L_nopt")
            for k in range(8):
                a = tYG if k < 4 else tYG2
                I(f"global_load_dwordx2 v[{vD}:{vD+1}], v{a}, s[{sWS}:{sWS+1}] offset:{(k & 3)*2048 - 4096} sc1")
        G.L("L_nopt")
        G.vm_bound += 17
    def pv(beta, h):
        j0 = beta*16 + h*8
        G.vm_wait(vidx[j0 + 7])
        for c4 in range(4):
            src = []
            for q in range(8):
                f, b0 = v_reg(j0 + q)
                if f == "a":
                    t = vRD + 8*(c4 & 1) + q
                    I(f"v_accvgpr_read_b32 v{t}, a{b0 + c4}")
                    src.append(t)
                else:
                    src.append(b0 + c4)
            for e, sel in ((0, sSELLO), (1, sSELHI)):
                pt = vPT + 8*(c4 & 1) + 4*e
                for i in range(4):
                    I(f"v_perm_b32 v{pt+i}, v{src[2*i+1]}, v{src[2*i]}, s{sel}")
            for e in (0, 1):
                pt = vPT + 8*(c4 & 1) + 4*e
                acc = aACC + 4*(h*8 + 2*c4 + e)
                c = "0" if beta == 0 else f"a[{acc}:{acc+3}]"
                I(f"v_mfma_f32_16x16x32_bf16 a[{acc}:{acc+3}], v[{vP+4*beta}:{vP+4*beta+3}], v[{pt}:{pt+3}], {c}")
    pv(0, 0); v_loads(vpost[1])
    G.vm_wait(wl[0])
    I("s_waitcnt lgkmcnt(0)")
    stamp(14)
    I("s_barrier")
    stamp(15)
    tr("B2")
    vR = vRD
    I(f"ds_read_b128 v[{vR}:{vR+3}], v{vT+2} offset:{M_MX - MISC}")
    I(f"ds_read_b128 v[{vR+4}:{vR+7}], v{vT+2} offset:{M_LS - MISC}")
    I(f"v_mov_b32 v{vT+7}, {M_G}")
    I(f"ds_read_b128 v[{vR+8}:{vR+11}], v{vT+7}")
    for s in range(2):
        I(f"ds_read_b64_tr_b16 a[{aW2+4*s}:{aW2+4*s+1}], v{vWB+1} offset:{s*4096}")
        I(f"ds_read_b64_tr_b16 a[{aW2+4*s+2}:{aW2+4*s+3}], v{vWB+1} offset:{s*4096+2048}")
        I(f"ds_read_b128 v[{vPT+4*s}:{vPT+4*s+3}], v{vHB} offset:{s*64}")
    I("s_waitcnt lgkmcnt(6)")
    for r in range(4):
        I(f"v_readfirstlane_b32 s{sG+r}, v{vR+8+r}")
    I(f"v_max3_f32 v{vM}, v{vR}, v{vR+1}, v{vR+2}")
    I(f"v_max_f32 v{vM}, v{vM}, v{vR+3}")
    for w in range(4):
        I(f"v_sub_f32 v{vR+w}, v{vR+w}, v{vM}")
    for w in range(4):
        I(f"v_exp_f32 v{vR+w}, v{vR+w}")
    I(f"v_mul_f32 v{vL}, v{vR}, v{vR+4}")
    for w in range(1, 4):
        I(f"v_fmac_f32 v{vL}, v{vR+w}, v{vR+4+w}")
    I(f"s_lshr_b32 s{sT1}, s{sWAVE}, 1")
    for w in range(4):
        I(f"v_readlane_b32 s{sF+w}, v{vR+w}, s{sT1}")
    I(f"v_and_b32 v{vT+7}, 2, v{vLANE}")
    I(f"v_cmp_eq_u32 vcc, 0, v{vT+7}")
    I(f"v_cndmask_b32 v{vR+12}, v{vL}, v{vM}, vcc")
    I(f"v_mov_b32 v{vR+13}, s{sTAG}")
    I(f"s_lshl_b32 s{sT1}, s2, 5")
    I(f"s_add_u32 s{sT1}, s{sT1}, {OSOFF}")
    I(f"v_lshlrev_b32 v{vT+7}, 3, v{vLANE}")
    I(f"v_add_u32 v{vT+7}, s{sT1}, v{vT+7}")
    I(f"s_cmp_eq_u32 s{sWAVE}, 0")
    I("s_cbranch_scc0 L_nostat")
    I("s_mov_b64 exec, 0xf")
    I(f"global_store_dwordx2 v{vT+7}, v[{vR+12}:{vR+13}], s[{sWS}:{sWS+1}] sc1")
    I("s_mov_b64 exec, -1")
    G.L("L_nostat")
    set_par()
    G.vm_bound += 1
    vYB, vYA = vT + 12, vT + 4
    I("s_waitcnt lgkmcnt(0)")
    for s in range(2):
        c = "0" if s == 0 else f"v[{vYB}:{vYB+3}]"
        I(f"v_mfma_f32_16x16x32_bf16 v[{vYB}:{vYB+3}], v[{vPT+4*s}:{vPT+4*s+3}], a[{aW2+4*s}:{aW2+4*s+3}], {c}")
    for s in range(4):
        I(f"ds_read_b64_tr_b16 a[{aWO+4*s}:{aWO+4*s+1}], v{vWB} offset:{s*4096}")
        I(f"ds_read_b64_tr_b16 a[{aWO+4*s+2}:{aWO+4*s+3}], v{vWB} offset:{s*4096+2048}")
    v_loads(vpost[2])
    pv(0, 1); v_loads(vpost[3])
    pv(1, 0); v_loads(4); pv(1, 1); v_loads(64)
    stamp(4)
    tr("allV_issued")
    def red_writes(lo):
        I("s_mov_b64 exec, 0xffff")
        for i in range(lo, lo + 8):
            I(f"ds_write_b64 v{tRW}, a[{aACC+4*i}:{aACC+4*i+1}] offset:{i*128}")
        I("s_mov_b64 exec, -1")
    pv(2, 0); pv(2, 1); pv(3, 0)
    red_writes(0)
    pv(3, 1)
    stamp(5)
    tr("pv_done")
    red_writes(8)
    I("s_waitcnt lgkmcnt(0)")
    I("s_barrier")
    vR = vRING
    for w in range(4):
        for e in range(2):
            I(f"ds_read_b32 v{vR+2*w+e}, v{tRR if w < 2 else tRR2} offset:{(w & 1)*32768 + e*128}")
    for w in range(4):
        I(f"s_waitcnt lgkmcnt({6-2*w})")
        for e in range(2):
            if w == 0: I(f"v_mul_f32 v{vR+8+e}, s{sF}, v{vR+e}")
            else: I(f"v_fmac_f32 v{vR+8+e}, s{sF+w}, v{vR+2*w+e}")
    I(f"v_cvt_pk_bf16_f32 v{tPO}, v{vR+8}, v{vR+9}")
    I(f"global_store_dwordx2 v{tOD}, v[{tPO}:{tPO+1}], s[{sWS}:{sWS+1}] sc1")
    stamp(6)
    tr("o_pub")
    I(f"s_cmp_eq_u32 s{sC}, 7")
    I("s_cbranch_scc1 L_fin")
    vO = vRING + 16
    vSt = vRING + 32
    def s_load():
        I(f"global_load_dwordx2 v[{vSt}:{vSt+1}], v{tGS}, s[{sWS}:{sWS+1}] sc1")
    def o_loads(base=None):
        base = vO if base is None else base
        for k in range(8):
            a = tG1 if k < 4 else tG2
            I(f"global_load_dwordx2 v[{base+2*k}:{base+2*k+1}], v{a}, s[{sWS}:{sWS+1}] offset:{(k & 3)*2048 - 4096} sc1")
    s_load()
    o_loads()
    I("s_waitcnt vmcnt(8)")
    poll("s", s_load, lambda: tagcheck([vSt+1]))
    vW0 = vSt + 2
    I(f"v_mov_b32_dpp v{vW0}, v{vSt} row_shr:2 row_mask:0xf bank_mask:0xf")
    I(f"v_mov_b32 v{vW0+1}, v{vW0}")
    for ror in (4, 8):
        I(f"v_max_f32_dpp v{vW0+1}, v{vW0+1}, v{vW0+1} row_ror:{ror} row_mask:0xf bank_mask:0xf")
    I(f"v_mov_b32 v{vW0+2}, v{vW0+1}")
    I(f"v_permlane16_swap_b32 v{vW0+1}, v{vW0+2}")
    I(f"v_max_f32 v{vW0+1}, v{vW0+1}, v{vW0+2}")
    I(f"v_sub_f32 v{vW0}, v{vW0}, v{vW0+1}")
    I(f"v_exp_f32 v{vW0}, v{vW0}")
    I(f"v_mul_f32 v{vW0+1}, v{vW0}, v{vSt}")
    for ror in (4, 8):
        I(f"v_add_f32_dpp v{vW0+1}, v{vW0+1}, v{vW0+1} row_ror:{ror} row_mask:0xf bank_mask:0xf")
    I(f"v_mov_b32 v{vW0+2}, v{vW0+1}")
    I(f"v_permlane16_swap_b32 v{vW0+1}, v{vW0+2}")
    I(f"v_add_f32 v{vW0+1}, v{vW0+1}, v{vW0+2}")
    I(f"v_rcp_f32 v{vW0+1}, v{vW0+1}")
    I(f"s_lshr_b32 s{sT1}, s{sB}, 1")
    I(f"s_add_u32 s{sT1}, s{sT1}, 2")
    I(f"v_mul_f32 v{vW0}, v{vW0}, v{vW0+1}")
    for k in range(8):
        I(f"v_readlane_b32 s{sWT+k}, v{vW0}, s{sT1}")
        if k < 7: I(f"s_add_u32 s{sT1}, s{sT1}, 4")
    I("s_waitcnt vmcnt(0)")
    stamp(16)
    if dpoll: poll2("o", o_loads, 8, [vO+2*k+1 for k in range(8)], [vO+96+2*k+1 for k in range(8)])
    else: poll("o", o_loads, lambda: tagcheck([vO+2*k+1 for k in range(8)]))
    stamp(17)
    tr("o_ok")
    vo0, vo1 = vW0+3, vW0+4
    for k in range(8):
        I(f"v_lshlrev_b32 v{vW0+5}, 16, v{vO+2*k}   ; async-ok")
        I(f"v_and_b32 v{vW0+6}, 0xffff0000, v{vO+2*k}   ; async-ok")
        if k == 0:
            I(f"v_mul_f32 v{vo0}, s{sWT}, v{vW0+5}")
            I(f"v_mul_f32 v{vo1}, s{sWT}, v{vW0+6}")
        else:
            I(f"v_fmac_f32 v{vo0}, s{sWT+k}, v{vW0+5}")
            I(f"v_fmac_f32 v{vo1}, s{sWT+k}, v{vW0+6}")
    I(f"v_cvt_pk_bf16_f32 v{vo0}, v{vo0}, v{vo1}")
    I(f"ds_write_b32 v{tOI}, v{vo0}")
    I("s_waitcnt lgkmcnt(0)")
    I("s_barrier")
    vOA = vRING + 64
    for s in range(4):
        I(f"ds_read_b128 v[{vOA+4*s}:{vOA+4*s+3}], v{vWB+2} offset:{s*64}")
    for s in range(4):
        I(f"s_waitcnt lgkmcnt({3-s})")
        c = "0" if s == 0 else f"v[{vYA}:{vYA+3}]"
        I(f"v_mfma_f32_16x16x32_bf16 v[{vYA}:{vYA+3}], v[{vOA+4*s}:{vOA+4*s+3}], a[{aWO+4*s}:{aWO+4*s+3}], {c}")
    vYY = vOA + 16
    for r in range(4):
        I(f"v_sub_f32 v{vYY+r}, v{vYA+r}, v{vYB+r}")
        I(f"v_fma_f32 v{vYY+r}, v{vYY+r}, s{sG+r}, v{vYB+r}")
    keep_group(vYY, 1)
    I(f"v_mov_b32 v{tPY}, v{vYY}")
    I(f"global_store_dwordx2 v{tYS}, v[{tPY}:{tPY+1}], s[{sWS}:{sWS+1}] sc1")
    stamp(18)
    tr("y_pub")
    I(f"s_sub_u32 s{sT1}, 7, s{sB}")
    I(f"s_cmp_eq_u32 s{sS}, s{sT1}")
    I("s_cbranch_scc0 L_fin")
    vY = vRING + 128 - 8*0
    def y_loads(base=None):
        base = vY if base is None else base
        for k in range(8):
            a = tYG if k < 4 else tYG2
            I(f"global_load_dwordx2 v[{base+2*k}:{base+2*k+1}], v{a}, s[{sWS}:{sWS+1}] offset:{(k & 3)*2048 - 4096} sc1")
    y_loads()
    I("s_waitcnt vmcnt(0)")
    if dpoll: poll2("y", y_loads, 8, [vY+2*k+1 for k in range(8)], [vY+16+2*k+1 for k in range(8)])
    else: poll("y", y_loads, lambda: tagcheck([vY+2*k+1 for k in range(8)]))
    vZ = vPT
    for k in range(4):
        I(f"v_add_f32 v{vZ+k}, v{vY+4*k}, v{vY+4*k+2}   ; async-ok")
    I(f"v_add_f32 v{vZ}, v{vZ}, v{vZ+1}")
    I(f"v_add_f32 v{vZ+2}, v{vZ+2}, v{vZ+3}")
    I(f"v_add_f32 v{vZ}, v{vZ}, v{vZ+2}")
    xsum(vZ, vZ+1)
    I(f"v_cvt_pk_bf16_f32 v{vZ}, v{vZ}, v{vZ}")
    I("s_mov_b64 exec, 0xffff")
    I(f"buffer_store_short v{vZ}, v{tOUT}, s[{rOUT}:{rOUT+3}], s{sOUTS} offen")
    I("s_cmp_eq_u32 s2, 15")
    I("s_cbranch_scc0 L_fin")
    I(f"s_cmp_eq_u32 s{sWAVE}, 0")
    I("s_cbranch_scc0 L_fin")
    I(f"v_mov_b32 v{vZ+2}, s{sTAG}")
    I(f"v_mov_b32 v{vZ+3}, {EPOCH}")
    I("s_mov_b64 exec, 1")
    I(f"global_store_dword v{vZ+3}, v{vZ+2}, s[{sWS}:{sWS+1}] sc1")
    G.L("L_fin")
    if trace:
        I("s_mov_b64 exec, -1")
        tr("end")
        I(f"s_lshl_b32 s{sT0}, s2, 2")
        I(f"s_add_u32 s{sT0}, s{sT0}, s{sWAVE}")
        I(f"s_lshl_b32 s{sT0}, s{sT0}, 8")
        I(f"s_add_u32 s{sT0}, s{sT0}, {STAMP_OFF}")
        I(f"v_lshlrev_b32 v{vT}, 2, v{vLANE}")
        I(f"v_add_u32 v{vT}, s{sT0}, v{vT}")
        I(f"global_store_dword v{vT}, v{vTR}, s[{sWS}:{sWS+1}]")
    if stamps:
        I("s_mov_b64 exec, -1")
        stamp(7)
        I(f"s_cmp_eq_u32 s{sWAVE}, {swave}")
        I("s_cbranch_scc0 L_end")
        if dbgwg is not None:
            for j, w in enumerate(dbgwg):
                I(f"s_cmp_eq_u32 s2, {w}")
                I(f"s_cbranch_scc0 L_dbg{j}")
                I(f"v_mov_b32 v{vT}, 0")
                I("s_mov_b64 exec, 1")
                for k in range(8):
                    I(f"v_mov_b32 v{vT+2}, s{sSTAMP+2*k}")
                    I(f"global_store_dword v{vT}, v{vT+2}, s[{sDBG}:{sDBG+1}] offset:{32*j + 4*k}")
                G.L(f"L_dbg{j}")
            I("s_endpgm")
        I(f"s_mul_i32 s{sT0}, s2, 64")
        I(f"s_add_u32 s{sT0}, s{sT0}, {STAMP_OFF}")
        I(f"v_mov_b32 v{vT}, s{sT0}")
        I("s_mov_b64 exec, 1")
        for k in range(8):
            I(f"v_mov_b32 v{vT+2}, s{sSTAMP+2*k}")
            I(f"v_mov_b32 v{vT+3}, s{sSTAMP+2*k+1}")
            I(f"global_store_dwordx2 v{vT}, v[{vT+2}:{vT+3}], s[{sWS}:{sWS+1}] offset:{8*k}")
    G.L("L_end")
    I("s_endpgm")
    G.L("L_code_end")
    return G

HEADER = open("gated_mix__gqa_block_cached__dense_activation_relu__decode.s.ref").read().split("; Override launch")[0]

def emit(path, **kw):
    G = gen(**kw)
    for p in check_async(G.lines): print("ASYNC:", p)
    body, nn = G.text()
    src = HEADER + f"""; Override launch geometry by editing the next line (default: block=256,
; grid=ceil(out_elems/256), lds=0). Harness parses it; keep it on one line.
; @launch grid=(256,1,1) block=(256,1,1) lds={LDS_BYTES}
.amdgcn_target "amdgcn-amd-amdhsa--gfx950"
.text
.globl {NAME}
.p2align 8
.type {NAME},@function
{NAME}:
{body}
.section .rodata,"a"
.p2align 6
.amdhsa_kernel {NAME}
  .amdhsa_next_free_vgpr 512
  .amdhsa_next_free_sgpr 102
  .amdhsa_accum_offset 256
  .amdhsa_group_segment_fixed_size 0
  .amdhsa_kernarg_size 96
  .amdhsa_user_sgpr_count 2
  .amdhsa_user_sgpr_kernarg_segment_ptr 1
  .amdhsa_system_sgpr_workgroup_id_x 1
.end_amdhsa_kernel
"""
    open(path, "w").write(src)
    if G.trl: open(path.replace(".s", ".labels"), "w").write("\n".join(G.trl))
    return nn

if __name__ == "__main__":
    out = sys.argv[1] if len(sys.argv) > 1 else "k.s"
    kw = eval("dict(" + (sys.argv[2] if len(sys.argv) > 2 else "") + ")")
    print("nops inserted:", emit(out, **kw))
```

```python
import sys, struct, math
from asmlib import Gen, check_async

NAME = "gated_mix__gqa_block_cached__dense_activation_relu__decode_kernel"

QOFF, HOFF, ODOFF, OSOFF, YOFF, EPOCH = 0x0, 0x10000, 0x60000, 0xE0000, 0x100000, 0xF8000
STAMP_OFF = 200 << 20
WOI, W2I = 131072, 147456
XI, RT = WOI, WOI + 4096
QI, OI, HI, MISC = 155648, 156672, 157696, 158208
M_G, M_MX, M_LS = MISC, MISC + 16, MISC + 64
LDS_BYTES = 163840
sX, sK, sV, sWQ, sWO, sBX, sW1, sW2, sGW, sOUT, sDBG, sWS = 4, 6, 8, 10, 12, 14, 16, 18, 20, 22, 24, 26
rK, rV, rW, rX, rWO, rW2, rOUT, rG = 28, 32, 36, 40, 44, 48, 56, 60
sOUTB, sBSTR, sLO, sTASK = 52, 53, 54, 55
sWAVE = 3
sGRP, sS, sB, sHKV, sC, sT0, sLDSW, sKV, sTAG, sSELLO, sSELHI, sSC = 64, 65, 66, 67, 68, 69, 70, 71, 72, 74, 75, 76
sSTR, sWA, sVB = 77, 78, 79
sSTAMP = 80
sP0, sP1, sT1, sT2 = 96, 98, 100, 101
sWT = 4
sG = 12
sF = 36
sOUTS, sWB_ = 52, 53
vLANE = 1
vTR = 0
vKD = 2
vKA = 10
vVO = 14
vA0 = 15
vT = 16
vG_, vN_ = 20, 21
vGX = 232
vS = 32
vTA = 32
vRD = 48
vPT = 64
vRING = 80
vP = 240
aACC, aQ, aKT, aV = 0, 64, 96, 160
aWO, aW2 = 64, 80
tRW, tRR, tRR2, tOD, tG1, tG2, tGS, tOI, tYS, tYG, tYG2, tOUT = range(vTA, vTA + 12)
tPO, tPY = vTA + 12, vTA + 14

def f32(x):
    return "0x%08x" % struct.unpack("<I", struct.pack("<f", x))[0]

def gen(trace=False, psleep=0, W=8, W2=None, stamps=False, code_pf=True, spin=100000, wf='nt', kfirst=2, vrole=0, winfirst=True,
        vpre=8, cover=8, vmid=12, vqk=(4, 4, 4), vpost=(2, 2, 2, 2), swave=0, spts=(1, 2, 3, 4, 5, 6, 7),
        nopoll=(), norole=False, skip_w=False, kearly=2, vearly=0, We=None, pretouch=0, pf_late=False, steer='odd', dbgwg=None, dpoll=0, wlate=False, glate=False):
    assert kfirst <= 2
    G = Gen()
    Wc = [W]
    I, vm = G.I, G.vm
    nst = [0]
    def stamp(pt):
        if stamps and pt in spts:
            k = nst[0]; nst[0] += 1
            assert k < 8
            I(f"s_memrealtime s[{sSTAMP+2*k}:{sSTAMP+2*k+1}]")
            I("s_waitcnt lgkmcnt(0)")
    trl = []
    def tr(label):
        if trace:
            k = len(trl); trl.append(label)
            assert k < 64
            I(f"s_memrealtime s[{sP1}:{sP1+1}]")
            I("s_waitcnt lgkmcnt(0)")
            I(f"v_writelane_b32 v{vTR}, s{sP1}, {k}")
    G.trl = trl
    sPAR = 62
    nlab = [0]; par_on = [False]
    def window():
        G.window(Wc[0])
        if We and par_on[0] and We < Wc[0]:
            nlab[0] += 1
            I(f"s_cbranch_vccnz L_w{nlab[0]}")
            I(f"s_waitcnt vmcnt({We-1})")
            G.L(f"L_w{nlab[0]}")
    def set_par():
        if We: I(f"s_mov_b64 vcc, s[{sPAR}:{sPAR+1}]")
    def srd(r, p, size):
        I(f"s_mov_b32 s{r}, s{p}")
        I(f"s_and_b32 s{r+1}, s{p+1}, 0xffff")
        I(f"s_mov_b32 s{r+2}, {size}")
        I(f"s_mov_b32 s{r+3}, 0x20000")
    def xsum(v, t, op="v_add_f32"):
        I(f"v_mov_b32 v{t}, v{v}")
        I(f"v_permlane16_swap_b32 v{v}, v{t}")
        I(f"{op} v{v}, v{v}, v{t}")
        I(f"v_mov_b32 v{t}, v{v}")
        I(f"v_permlane32_swap_b32 v{v}, v{t}")
        I(f"{op} v{v}, v{v}, v{t}")
    def poll(name, reload, check):
        if name in nopoll: return
        I(f"s_mov_b32 s{sT2}, 0")
        G.L(f"L_{name}_chk")
        check()
        I(f"s_cbranch_vccz L_{name}_ok")
        I(f"s_add_u32 s{sT2}, s{sT2}, 1")
        I(f"s_cmp_gt_u32 s{sT2}, {spin}")
        I(f"s_cbranch_scc1 L_{name}_ok")
        if psleep and name in ("o", "y", "s"): I(f"s_sleep {psleep}")
        reload()
        I("s_waitcnt vmcnt(0)")
        I(f"s_branch L_{name}_chk")
        G.L(f"L_{name}_ok")
    def poll2(name, loads, nld, regsA, regsB):
        if name in nopoll: return
        dA = [r - 1 for r in regsA]; dB = [r - 1 for r in regsB]
        tagcheck(regsA)
        I(f"s_cbranch_vccz L_{name}_ok")
        I(f"s_mov_b32 s{sT2}, 0")
        loads(dA[0])
        I(f"s_sleep {dpoll}")
        loads(dB[0])
        G.L(f"L_{name}_loop")
        I(f"s_waitcnt vmcnt({nld})")
        tagcheck(regsA)
        I(f"s_cbranch_vccz L_{name}_ok")
        loads(dA[0])
        I(f"s_waitcnt vmcnt({nld})")
        tagcheck(regsB)
        I(f"s_cbranch_vccz L_{name}_okB")
        loads(dB[0])
        I(f"s_add_u32 s{sT2}, s{sT2}, 1")
        I(f"s_cmp_gt_u32 s{sT2}, {spin}")
        I(f"s_cbranch_scc0 L_{name}_loop")
        G.L(f"L_{name}_okB")
        I("s_waitcnt vmcnt(0)") if False else None
        for a_, b_ in zip(dA, dB):
            I(f"v_mov_b32 v{a_}, v{b_}   ; async-ok")
        G.L(f"L_{name}_ok")
    def tagcheck(regs):
        I(f"v_cmp_ne_u32 vcc, s{sTAG}, v{regs[0]}")
        for r in regs[1:]:
            I(f"v_cmp_ne_u32 s[{sP0}:{sP0+1}], s{sTAG}, v{r}")
            I(f"s_or_b64 vcc, vcc, s[{sP0}:{sP0+1}]")
    def img_pos(dst, row, t):
        I(f"v_lshrrev_b32 v{dst}, 5, v{row}")
        I(f"v_lshlrev_b32 v{dst}, 6, v{dst}")
        I(f"v_bfe_u32 v{t}, v{row}, 2, 2")
        I(f"v_lshl_add_u32 v{dst}, v{t}, 4, v{dst}")
        I(f"v_bfe_u32 v{t}, v{row}, 4, 1")
        I(f"v_lshl_add_u32 v{dst}, v{t}, 3, v{dst}")
        I(f"v_and_b32 v{t}, 3, v{row}")
        I(f"v_lshl_add_u32 v{dst}, v{t}, 1, v{dst}")
    def keep_group(base, stride):
        for k, (lo, hi) in ((1, ("0xffff0000", "0")), (2, ("0", "0xffff")), (3, ("0", "0xffff0000"))):
            I(f"s_mov_b32 exec_lo, {lo}")
            I(f"s_mov_b32 exec_hi, {hi}")
            for r in range(stride):
                I(f"v_mov_b32 v{base+r}, v{base+stride*k+r}")
        I("s_mov_b64 exec, -1")
    def wimg_src(dst, stride_sreg_or_imm, t0, t1):
        I(f"v_lshrrev_b32 v{t0}, 3, v{vLANE}")
        I(f"v_and_b32 v{t1}, 6, v{t0}")
        I(f"v_and_b32 v{dst}, 7, v{vLANE}")
        I(f"v_xor_b32 v{t1}, v{t1}, v{dst}")
        if isinstance(stride_sreg_or_imm, str): I(f"v_mul_lo_u32 v{t0}, v{t0}, {stride_sreg_or_imm}")
        else: I(f"v_mul_u32_u24 v{t0}, {stride_sreg_or_imm}, v{t0}")
        I(f"v_lshl_add_u32 v{dst}, v{t1}, 4, v{t0}")
    def wimg_rd(dst, t0, t1):
        I(f"v_lshrrev_b32 v{t0}, 2, v{vLANE}")
        I(f"v_and_b32 v{dst}, 6, v{t0}")
        I(f"v_bfe_u32 v{t1}, v{vLANE}, 1, 1")
        I(f"v_xor_b32 v{dst}, v{dst}, v{t1}")
        I(f"v_lshlrev_b32 v{dst}, 4, v{dst}")
        I(f"v_lshl_or_b32 v{dst}, v{t0}, 7, v{dst}")
        I(f"v_and_b32 v{t1}, 1, v{vLANE}")
        I(f"v_lshl_or_b32 v{dst}, v{t1}, 3, v{dst}")

    if stamps:
        I(f"s_memrealtime s[{sSTAMP}:{sSTAMP+1}]"); nst[0] = 1
        for k in range(1, 8): I(f"s_mov_b64 s[{sSTAMP+2*k}:{sSTAMP+2*k+1}], 0")
    I("s_cmp_ge_u32 s2, 256")
    I("s_cbranch_scc1 L_end")
    I("s_load_dwordx16 s[4:19], s[0:1], 0")
    I("s_load_dwordx8 s[20:27], s[0:1], 64")
    I(f"v_lshrrev_b32 v{vT}, 6, v0")
    I(f"v_and_b32 v{vLANE}, 63, v0")
    I(f"v_readfirstlane_b32 s{sWAVE}, v{vT}")
    if trace:
        I("s_waitcnt lgkmcnt(0)")
        I(f"v_mov_b32 v{vTR}, 0")
        tr("entry")
    def code_prefetch():
        if code_pf:
            I(f"s_cmp_eq_u32 s{sWAVE}, 3")
            I("s_cbranch_scc0 L_nopf")
            I(f"s_getpc_b64 s[{sP0}:{sP0+1}]")
            G.L("L_pc")
            I(f"s_sub_u32 s{sP0}, s{sP0}, L_pc-{NAME}")
            I(f"s_subb_u32 s{sP0+1}, s{sP0+1}, 0")
            I(f"v_lshlrev_b32 v{vT+1}, 7, v{vLANE}")
            for k in range(2):
                I(f"v_min_u32 v{vT+2}, L_code_end-{NAME}-4, v{vT+1}")
                I(f"global_load_dword v{vP+15}, v{vT+2}, s[{sP0}:{sP0+1}]")
                if k < 1: I(f"v_add_u32 v{vT+1}, 0x2000, v{vT+1}")
            G.L("L_nopf")
    if not pf_late: code_prefetch()
    I(f"s_lshr_b32 s{sGRP}, s2, 3")
    I(f"s_and_b32 s{sS}, s2, 7")
    I(f"s_lshr_b32 s{sB}, s{sGRP}, 3")
    I(f"s_and_b32 s{sHKV}, s{sGRP}, 7")
    I(f"s_add_u32 s{sC}, s{sS}, s{sHKV}")
    I(f"s_and_b32 s{sC}, s{sC}, 7")
    I(f"s_lshl_b32 s{sLDSW}, s{sWAVE}, 15")
    I(f"s_lshl_b32 s{sKV}, s{sGRP}, 21")
    I(f"s_lshl_b32 s{sT0}, s{sC}, 18")
    I(f"s_add_u32 s{sKV}, s{sKV}, s{sT0}")
    I(f"s_lshl_b32 s{sT0}, s{sWAVE}, 13")
    I(f"s_add_u32 s{sKV}, s{sKV}, s{sT0}")
    I(f"v_lshrrev_b32 v{vT}, 5, v{vLANE}")
    I(f"v_and_b32 v{vT+1}, 31, v{vLANE}")
    I(f"v_lshlrev_b32 v{vT+2}, 2, v{vT}")
    I(f"v_xor_b32 v{vT+1}, v{vT+1}, v{vT+2}")
    I(f"v_lshlrev_b32 v{vT+1}, 4, v{vT+1}")
    I(f"v_lshl_or_b32 v{vKD}, v{vT}, 9, v{vT+1}")
    for i in range(1, 8):
        I(f"v_xor_b32 v{vKD+i}, {(8*(i&1) + (i>>1)) << 4}, v{vKD}")
    I(f"v_lshrrev_b32 v{vG_}, 4, v{vLANE}")
    I(f"v_and_b32 v{vN_}, 15, v{vLANE}")
    I("s_waitcnt lgkmcnt(0)")
    srd(rK, sK, 0x4000000)
    kidx = {}
    def k_tile(t, win=True):
        tr(f"K{t}")
        I(f"s_add_u32 s{sT0}, s{sKV}, {t*32768}")
        for i in range(8):
            if i % 4 == 0:
                if i == 4: I(f"s_add_u32 s{sT0}, s{sT0}, 4096")
                I(f"s_add_u32 m0, s{sLDSW}, {(t & 3)*8192 + (i>>2)*4096}")
            if win: window()
            kidx[t] = vm(f"buffer_load_dwordx4 v{vKD+i}, s[{rK}:{rK+3}], s{sT0} offen offset:{(i&3)*1024} nt lds")
    vidx = {}
    def v_reg(j):
        return ("a", aV + 4*j) if j < 24 else ("v", vRING + 4*(j-24))
    vcur = [None]; vnext = [0]
    def v_loads(n, win=True):
        for _ in range(min(n, 64 - vnext[0])):
            j = vnext[0]; vnext[0] += 1
            if j % 4 == 0: tr(f"V{j}")
            beta, h, tp, r = j >> 4, (j >> 3) & 1, (j >> 2) & 1, j & 3
            base = (2*beta + tp)*32768 + (r >> 1)*4096
            if vcur[0] != base:
                I(f"s_add_u32 s{sVB}, s{sKV}, {base}")
                vcur[0] = base
            if win: window()
            f, b0 = v_reg(j)
            vidx[j] = vm(f"buffer_load_dwordx4 {f}[{b0}:{b0+3}], v{vVO}, s[{rV}:{rV+3}], s{sVB} offen offset:{(r&1)*2048 + h*256} nt")
    for t in range(kearly): k_tile(t, win=False)
    srd(rV, sV, 0x4000000)
    I(f"v_lshlrev_b32 v{vVO}, 9, v{vG_}")
    I(f"v_lshl_or_b32 v{vVO}, v{vN_}, 4, v{vVO}")
    v_loads(vearly, win=False)
    if pf_late: code_prefetch()
    I(f"s_load_dword s{sTAG}, s[{sWS}:{sWS+1}], {EPOCH}")
    I(f"s_mov_b32 s{sTASK}, 0")
    if norole: I("s_branch L_roleDone")
    I(f"s_and_b32 s{sT0}, s{sS}, 1")
    I(f"s_cmp_eq_u32 s{sT0}, 0")
    I("s_cbranch_scc0 L_gateLoads")
    I(f"s_lshl_b32 s{sT0}, s{sHKV}, 2")
    I(f"s_lshr_b32 s{sT1}, s{sS}, 1")
    I(f"s_add_u32 s{sT0}, s{sT0}, s{sT1}")
    I(f"s_cmp_lt_u32 s{sT0}, 23")
    I("s_cbranch_scc0 L_gateLoads")
    I(f"s_mul_i32 s{sT1}, s{sB}, 23")
    I(f"s_add_u32 s{sT0}, s{sT0}, s{sT1}")
    I(f"s_cmp_lt_u32 s{sT0}, 64")
    I("s_cbranch_scc1 L_roleQ")
    I(f"s_sub_u32 s{sT0}, s{sT0}, 64")
    I(f"s_lshl_b32 s{sT1}, s{sT0}, 7")
    I(f"s_add_u32 s{rW}, s{sW1}, s{sT1}")
    I(f"s_addc_u32 s{rW+1}, s{sW1+1}, 0")
    I(f"s_sub_u32 s{rW+2}, {448*3584}, s{sT1}")
    I(f"s_movk_i32 s{sSTR}, 3584")
    I(f"s_lshl_b32 s{sOUTB}, s{sT0}, 8")
    I(f"s_add_u32 s{sOUTB}, s{sOUTB}, {HOFF}")
    I(f"s_movk_i32 s{sBSTR}, 7168")
    I(f"s_mov_b32 s{sLO}, 0")
    I("s_branch L_taskLoads")
    G.L("L_roleQ")
    I(f"s_lshl_b32 s{sT1}, s{sT0}, 7")
    I(f"s_add_u32 s{rW}, s{sWQ}, s{sT1}")
    I(f"s_addc_u32 s{rW+1}, s{sWQ+1}, 0")
    I(f"s_sub_u32 s{rW+2}, {448*8192}, s{sT1}")
    I(f"s_movk_i32 s{sSTR}, 8192")
    I(f"s_lshr_b32 s{sT1}, s{sT0}, 3")
    I(f"s_lshl_b32 s{sOUTB}, s{sT1}, 13")
    I(f"s_and_b32 s{sT1}, s{sT0}, 7")
    I(f"s_lshl_b32 s{sT1}, s{sT1}, 8")
    I(f"s_add_u32 s{sOUTB}, s{sOUTB}, s{sT1}")
    I(f"s_movk_i32 s{sBSTR}, 2048")
    I(f"s_mov_b32 s{sLO}, 0xff800000")
    G.L("L_taskLoads")
    I(f"s_and_b32 s{rW+1}, s{rW+1}, 0xffff")
    I(f"s_mov_b32 s{rW+3}, 0x20000")
    srd(rX, sX, 3584)
    I(f"v_mul_u32_u24 v{vT}, 896, v{vG_}")
    I(f"v_lshl_add_u32 v{vT}, v{vN_}, 4, v{vT}")
    I(f"s_lshl_b32 s{sT0}, s{sWAVE}, 8")
    I(f"s_lshl_b32 s{sT1}, s{sWAVE}, 10")
    I(f"s_add_u32 m0, s{sT1}, {XI}")
    wimg_src(vT+1, f"s{sSTR}", vT+2, vT+3)
    I(f"buffer_load_dwordx4 v{vT}, s[{rX}:{rX+3}], s{sT0} offen {wf} lds")
    I(f"s_lshl_b32 s{sT1}, s{sSTR}, 3")
    I(f"s_lshl_b32 s{sT0}, s{sWAVE}, 7")
    I(f"s_mul_i32 s{sT0}, s{sT0}, s{sSTR}")
    for i in range(16):
        I(f"s_add_u32 m0, s{sLDSW}, {16384 + i*1024}")
        if i: I(f"s_add_u32 s{sT0}, s{sT0}, s{sT1}")
        I(f"buffer_load_dwordx4 v{vT+1}, s[{rW}:{rW+3}], s{sT0} offen {wf} lds")
    I(f"s_mov_b32 s{sTASK}, 1")
    G.L("L_gateLoads")
    def gate_loads(rx, rg, dst):
        srd(rg, sGW, 896)
        I(f"s_mul_i32 s{sT0}, s{sWAVE}, 896")
        I(f"s_add_u32 s{rx}, s{sX}, s{sT0}")
        I(f"s_addc_u32 s{rx+1}, s{sX+1}, 0")
        I(f"s_and_b32 s{rx+1}, s{rx+1}, 0xffff")
        I(f"s_mov_b32 s{rx+2}, 896")
        I(f"s_mov_b32 s{rx+3}, 0x20000")
        I(f"v_lshlrev_b32 v{vT+7}, 4, v{vLANE}")
        return [f"buffer_load_dwordx4 v[{dst}:{dst+3}], v{vT+7}, s[{rx}:{rx+3}], 0 offen {wf}",
                f"buffer_load_dwordx4 v[{dst+4}:{dst+7}], v{vT+7}, s[{rg}:{rg+3}], 0 offen {wf}"]
    if not glate:
        for x_ in gate_loads(rX, rG, vGX): I(x_)
    G.L("L_roleDone")
    role_mark = G.vm_n; G.vm_bound += 21
    for t in range(kearly, kfirst): k_tile(t, win=winfirst)
    v_loads(vrole, win=winfirst)
    I(f"v_and_b32 v{vT+6}, 3, v{vN_}")
    I(f"v_lshrrev_b32 v{vT+7}, 2, v{vN_}")
    I(f"v_lshl_or_b32 v{vT+6}, v{vT+6}, 2, v{vT+7}")
    I(f"v_xor_b32 v{vT+7}, v{vG_}, v{vN_}")
    I(f"v_lshlrev_b32 v{vT+7}, 4, v{vT+7}")
    I(f"v_lshl_or_b32 v{vT+6}, v{vT+6}, 9, v{vT+7}")
    I(f"v_add_u32 v{vKA}, s{sLDSW}, v{vT+6}")
    for j in range(1, 4):
        I(f"v_xor_b32 v{vKA+j}, {j << 6}, v{vKA}")
    I(f"s_mov_b32 s{sSELLO}, 0x05040100")
    I(f"s_mov_b32 s{sSELHI}, 0x07060302")
    I(f"s_mov_b32 s{sSC}, {f32(math.log2(math.e)/16.0)}")
    I(f"s_cmp_eq_u32 s{sC}, 7")
    I(f"s_cselect_b32 s{sT1}, 0, {4096*896}")
    I(f"s_cselect_b32 s{sT2}, 0, {1792*896}")
    I(f"s_mov_b32 s{rWO}, s{sWO}")
    I(f"s_and_b32 s{rWO+1}, s{sWO+1}, 0xffff")
    I(f"s_mov_b32 s{rWO+2}, s{sT1}")
    I(f"s_mov_b32 s{rWO+3}, 0x20000")
    I(f"s_mov_b32 s{rW2}, s{sW2}")
    I(f"s_and_b32 s{rW2+1}, s{sW2+1}, 0xffff")
    I(f"s_mov_b32 s{rW2+2}, s{sT2}")
    I(f"s_mov_b32 s{rW2+3}, 0x20000")
    srd(rOUT, sOUT, 3584)
    I("s_waitcnt lgkmcnt(0)")
    I(f"s_add_u32 s{sTAG}, s{sTAG}, 1")
    if glate:
        I(f"s_cmp_eq_u32 s{sTASK}, 0")
        I("s_cbranch_scc1 L_taskEnd")
    I(f"s_waitcnt vmcnt({G.vm_n - role_mark})")
    stamp(10)
    tr("role_landed") if not glate else None
    if not glate:
        I(f"s_cmp_eq_u32 s{sTASK}, 0")
        I("s_cbranch_scc1 L_taskEnd")
    vA, vB, vC = vRING, vRING + 16, vRING + 80
    I(f"v_and_b32 v{vT}, 3, v{vLANE}")
    I(f"v_lshlrev_b32 v{vT}, 8, v{vT}")
    I(f"v_lshl_add_u32 v{vT}, v{vG_}, 3, v{vT}")
    I(f"s_lshl_b32 s{sT1}, s{sWAVE}, 10")
    I(f"s_add_u32 s{sT1}, s{sT1}, {XI}")
    I(f"v_add_u32 v{vT}, s{sT1}, v{vT}")
    wimg_rd(vT+8, vT+1, vT+2)
    I(f"s_add_u32 s{sT1}, s{sLDSW}, 16384")
    I(f"v_add_u32 v{vT+8}, s{sT1}, v{vT+8}")
    for ct in range(1, 4):
        I(f"v_xor_b32 v{vT+8+ct}, {ct << 5}, v{vT+8}")
    for s_ in range(4):
        I(f"ds_read_b64 v[{vA+4*s_}:{vA+4*s_+1}], v{vT} offset:{s_*64}")
        I(f"ds_read_b64 v[{vA+4*s_+2}:{vA+4*s_+3}], v{vT} offset:{s_*64+32}")
    def b_reads(s_):
        for ct in range(4):
            d = vB + 16*s_ + 4*ct
            I(f"ds_read_b64_tr_b16 v[{d}:{d+1}], v{vT+8+ct} offset:{s_*4096}")
            I(f"ds_read_b64_tr_b16 v[{d+2}:{d+3}], v{vT+8+ct} offset:{s_*4096+2048}")
    I("s_waitcnt lgkmcnt(7)")
    b_reads(0)
    for s_ in range(4):
        if s_ < 3:
            I("s_waitcnt lgkmcnt(7)")
            b_reads(s_ + 1)
            I("s_waitcnt lgkmcnt(8)")
        else:
            I("s_waitcnt lgkmcnt(0)")
        for ct in range(4):
            d = vB + 16*s_ + 4*ct
            c = "0" if s_ == 0 else f"v[{vC+4*ct}:{vC+4*ct+3}]"
            I(f"v_mfma_f32_16x16x32_bf16 v[{vC+4*ct}:{vC+4*ct+3}], v[{vA+4*s_}:{vA+4*s_+3}], v[{d}:{d+3}], {c}")
    I(f"s_lshl_b32 s{sT1}, s{sWAVE}, 10")
    I(f"s_add_u32 s{sT1}, s{sT1}, {RT}")
    I(f"v_lshlrev_b32 v{vT+2}, 2, v{vLANE}")
    I(f"v_add_u32 v{vT+3}, s{sT1}, v{vT+2}")
    keep_group(vC, 4)
    for r in range(4):
        I(f"ds_write_b32 v{vT+3}, v{vC+r} offset:{r*256}")
    I(f"s_lshl_b32 s{sT1}, s{sWAVE}, 8")
    I(f"s_add_u32 s{sT1}, s{sT1}, {RT}")
    I(f"v_add_u32 v{vT+3}, s{sT1}, v{vT+2}")
    I(f"s_mul_i32 s{sT1}, s{sWAVE}, s{sBSTR}")
    I(f"s_add_u32 s{sT1}, s{sT1}, s{sOUTB}")
    I(f"v_add_u32 v{vT+2}, s{sT1}, v{vT+2}")
    I(f"v_mov_b32 v{vT+13}, s{sTAG}")
    I("s_waitcnt lgkmcnt(0)")
    I("s_barrier")
    for w in range(4):
        I(f"ds_read_b32 v{vC+w}, v{vT+3} offset:{w*1024}")
    I("s_waitcnt lgkmcnt(0)")
    I(f"v_add_f32 v{vC}, v{vC}, v{vC+1}")
    I(f"v_add_f32 v{vC+2}, v{vC+2}, v{vC+3}")
    I(f"v_add_f32 v{vC}, v{vC}, v{vC+2}")
    I(f"v_max_f32 v{vC}, s{sLO}, v{vC}")
    I(f"v_mov_b32_dpp v{vC+1}, v{vC} quad_perm:[1,0,3,2] row_mask:0xf bank_mask:0xf")
    I(f"v_cvt_pk_bf16_f32 v{vT+12}, v{vC}, v{vC+1}")
    I("s_mov_b32 exec_lo, 0x55555555")
    I("s_mov_b32 exec_hi, 0x55555555")
    I(f"global_store_dwordx2 v{vT+2}, v[{vT+12}:{vT+13}], s[{sWS}:{sWS+1}] sc1")
    I("s_mov_b64 exec, -1")
    G.L("L_taskEnd")
    def gate_compute(xa, t):
        ga = xa + 4
        I(f"v_mov_b32 v{t}, 0")
        for j in range(4):
            I(f"v_lshlrev_b32 v{t+1}, 16, v{xa+j}")
            I(f"v_lshlrev_b32 v{t+2}, 16, v{ga+j}")
            I(f"v_and_b32 v{t+3}, 0xffff0000, v{xa+j}")
            I(f"v_and_b32 v{t+8}, 0xffff0000, v{ga+j}")
            I(f"v_fmac_f32 v{t}, v{t+1}, v{t+2}")
            I(f"v_fmac_f32 v{t}, v{t+3}, v{t+8}")
        for ror in (8, 4, 2, 1):
            I(f"v_add_f32_dpp v{t}, v{t}, v{t} row_ror:{ror} row_mask:0xf bank_mask:0xf")
        xsum(t, t+1)
        I(f"v_mul_f32 v{t}, {f32(-math.log2(math.e))}, v{t}")
        I(f"v_exp_f32 v{t}, v{t}")
        I(f"v_add_f32 v{t}, 1.0, v{t}")
        I(f"v_rcp_f32 v{t}, v{t}")
        I(f"s_lshl_b32 s{sT1}, s{sWAVE}, 2")
        I(f"s_add_u32 s{sT1}, s{sT1}, {M_G}")
        I(f"v_mov_b32 v{t+1}, s{sT1}")
        I(f"ds_write_b32 v{t+1}, v{t}")
    if not glate: gate_compute(vGX, vT)
    stamp(1)
    I("s_waitcnt lgkmcnt(0)") if trace else None
    tr("role_done")
    G.vm_bound = (G.vm_n + 21) if glate else (G.vm_n - role_mark + 1)
    if We:
        if steer == 'odd':
            I(f"s_and_b32 s{sT0}, s{sS}, 1")
            I(f"s_cmp_eq_u32 s{sT0}, 1")
        else:
            I(f"s_cmp_eq_u32 s{sTASK}, 1")
        I(f"s_cselect_b64 s[{sPAR}:{sPAR+1}], -1, 0")
        par_on[0] = True
        set_par()
    for t in range(kfirst, 4): k_tile(t)
    v_loads(vpre)
    I(f"s_lshl_b32 s{sT0}, s{sHKV}, 2")
    I(f"s_add_u32 s{sT0}, s{sT0}, s{sB}")
    I(f"s_lshl_b32 s{sT0}, s{sT0}, 11")
    I(f"s_lshl_b32 s{sT1}, s{sWAVE}, 9")
    I(f"s_add_u32 s{sT0}, s{sT0}, s{sT1}")
    I(f"v_lshlrev_b32 v{vA0}, 3, v{vLANE}")
    I(f"v_add_u32 v{vA0}, s{sT0}, v{vA0}")
    vq = vS
    qload = f"global_load_dwordx2 v[{vq}:{vq+1}], v{vA0}, s[{sWS}:{sWS+1}] sc1"
    window()
    stamp(11)
    tr("q_issue")
    qg = vm(qload)
    v_loads(cover)
    I(f"s_lshl_b32 s{sT1}, s{sWAVE}, 8")
    I(f"s_add_u32 s{sT1}, s{sT1}, {QI}")
    I(f"v_lshlrev_b32 v{vT}, 2, v{vLANE}")
    I(f"v_add_u32 v{vT}, s{sT1}, v{vT}")
    I(f"v_and_b32 v{vT+1}, 1, v{vLANE}")
    I(f"v_lshlrev_b32 v{vT+1}, 9, v{vT+1}")
    I(f"v_lshl_add_u32 v{vT+1}, v{vG_}, 4, v{vT+1}")
    I(f"v_add_u32 v{vT+1}, {QI}, v{vT+1}")
    G.vm_wait(qg)
    poll("q", lambda: I(qload), lambda: tagcheck([vq+1]))
    stamp(2)
    tr("q_ok")
    if W2: Wc[0] = W2
    set_par()
    I(f"ds_write_b32 v{vT}, v{vq}")
    I("s_waitcnt lgkmcnt(0)")
    I("s_barrier")
    for s_ in range(8):
        I(f"ds_read_b128 a[{aQ+4*s_}:{aQ+4*s_+3}], v{vT+1} offset:{s_*64}")
    def k_reads(t):
        for s in range(8):
            d = aKT + 32*(t & 1) + 4*s
            I(f"ds_read_b128 a[{d}:{d+3}], v{vKA + (s & 3)} offset:{(t & 3)*8192 + (s >> 2)*256}")
    def qk_mfma(t):
        for s in range(8):
            d = aKT + 32*(t & 1) + 4*s
            c = "0" if s == 0 else f"v[{vS+4*t}:{vS+4*t+3}]"
            I(f"v_mfma_f32_16x16x32_bf16 v[{vS+4*t}:{vS+4*t+3}], a[{d}:{d+3}], a[{aQ+4*s}:{aQ+4*s+3}], {c}")
    vWD = vA0
    wimg_src(vWD, 896, vT+6, vT+7)
    I(f"s_lshl_b32 s{sWA}, s{sHKV}, 9")
    I(f"s_lshl_b32 s{sT1}, s{sB}, 7")
    I(f"s_add_u32 s{sWA}, s{sWA}, s{sT1}")
    I(f"s_lshl_b32 s{sT1}, s{sWAVE}, 5")
    I(f"s_add_u32 s{sWA}, s{sWA}, s{sT1}")
    I(f"s_mul_i32 s{sWA}, s{sWA}, 896")
    I(f"s_lshl_b32 s{sT2}, s{sC}, 7")
    I(f"s_add_u32 s{sWA}, s{sWA}, s{sT2}")
    I(f"s_mul_i32 s{sWB_}, s{sHKV}, 224")
    I(f"s_mul_i32 s{sT1}, s{sB}, 56")
    I(f"s_add_u32 s{sWB_}, s{sWB_}, s{sT1}")
    I(f"s_lshl_b32 s{sT1}, s{sWAVE}, 4")
    I(f"s_add_u32 s{sWB_}, s{sWB_}, s{sT1}")
    I(f"s_mul_i32 s{sWB_}, s{sWB_}, 896")
    I(f"s_add_u32 s{sWB_}, s{sWB_}, s{sT2}")
    wnext = [0]; wl = [G.vm_n - 1]
    def w_loads(n, win=True):
        for _ in range(min(n, 6 - wnext[0])):
            i = wnext[0]; wnext[0] += 1
            if skip_w: continue
            if i < 4:
                I(f"s_lshl_b32 s{sT1}, s{sWAVE}, 12")
                I(f"s_add_u32 m0, s{sT1}, {WOI + i*1024}")
                if i: I(f"s_add_u32 s{sWA}, s{sWA}, {8*896}")
                if win: window()
                wl[0] = vm(f"buffer_load_dwordx4 v{vWD}, s[{rWO}:{rWO+3}], s{sWA} offen {wf} lds")
            else:
                k = i - 4
                I(f"s_lshl_b32 s{sT1}, s{sWAVE}, 11")
                I(f"s_add_u32 m0, s{sT1}, {W2I + k*1024}")
                if k: I(f"s_add_u32 s{sWB_}, s{sWB_}, {8*896}")
                if win: window()
                wl[0] = vm(f"buffer_load_dwordx4 v{vWD}, s[{rW2}:{rW2+3}], s{sWB_} offen {wf} lds")
    I("s_waitcnt lgkmcnt(0)")
    k_reads(0)
    for t in range(4):
        I("s_waitcnt lgkmcnt(0)")
        if t < 3: k_reads(t + 1)
        k_tile(t + 4)
        qk_mfma(t)
    if not wlate: w_loads(6)
    vH, vHA = vT + 8, vT + 6
    I(f"s_mul_i32 s{sT0}, s{sWAVE}, 896")
    I(f"s_mul_i32 s{sT1}, s{sHKV}, 112")
    I(f"s_add_u32 s{sT0}, s{sT0}, s{sT1}")
    I(f"s_mul_i32 s{sT1}, s{sB}, 28")
    I(f"s_add_u32 s{sT0}, s{sT0}, s{sT1}")
    I(f"s_lshl_b32 s{sT0}, s{sT0}, 3")
    I(f"s_add_u32 s{sT0}, s{sT0}, {HOFF}")
    I(f"v_min_u32 v{vHA}, 27, v{vLANE}")
    I(f"v_lshlrev_b32 v{vHA}, 3, v{vHA}")
    I(f"v_add_u32 v{vHA}, s{sT0}, v{vHA}")
    hload = f"global_load_dwordx2 v[{vH}:{vH+1}], v{vHA}, s[{sWS}:{sWS+1}] sc1"
    hg = vm(hload)
    v_loads(vmid)
    G.vm_wait(kidx[4])
    k_reads(4)
    for t in range(4, 8):
        I("s_waitcnt lgkmcnt(0)")
        if t < 7:
            G.vm_wait(kidx[t + 1])
            k_reads(t + 1)
        qk_mfma(t)
        if t < 7: v_loads(vqk[t - 4])
    stamp(3)
    tr("qk_done")
    G.vm_wait(hg)
    I("s_mov_b64 exec, 0xfffffff")
    poll("h", lambda: I(hload), lambda: tagcheck([vH+1]))
    I("s_mov_b64 exec, -1")
    I(f"v_cmp_gt_u32 vcc, 28, v{vLANE}")
    I(f"v_lshlrev_b32 v{vT+6}, 1, v{vLANE}")
    I(f"v_cndmask_b32 v{vH}, 0, v{vH}, vcc")
    img_pos(vT+7, vT+6, vT+2)
    I(f"s_lshl_b32 s{sT1}, s{sWAVE}, 7")
    I(f"s_add_u32 s{sT1}, s{sT1}, {HI}")
    I(f"v_add_u32 v{vT+7}, s{sT1}, v{vT+7}")
    I("s_mov_b32 exec_hi, 0")
    I(f"ds_write_b32 v{vT+7}, v{vH}")
    I("s_mov_b64 exec, -1")
    set_par()
    vM, vL = vT, vT + 1
    I(f"v_max3_f32 v{vM}, v{vS}, v{vS+1}, v{vS+2}")
    for k in range(3, 31, 2):
        I(f"v_max3_f32 v{vM}, v{vM}, v{vS+k}, v{vS+k+1}")
    I(f"v_max_f32 v{vM}, v{vM}, v{vS+31}")
    xsum(vM, vT+6, "v_max_f32")
    I(f"v_mul_f32 v{vM}, s{sSC}, v{vM}")
    for k in range(32):
        I(f"v_fma_f32 v{vS+k}, v{vS+k}, s{sSC}, -v{vM}")
    for k in range(32):
        I(f"v_exp_f32 v{vS+k}, v{vS+k}")
    I(f"v_add_f32 v{vL}, v{vS}, v{vS+1}")
    for k in range(2, 32):
        I(f"v_add_f32 v{vL}, v{vL}, v{vS+k}")
    for k in range(16):
        I(f"v_cvt_pk_bf16_f32 v{vP+k}, v{vS+2*k}, v{vS+2*k+1}")
    xsum(vL, vT+6)
    I(f"v_and_b32 v{vT+2}, 1, v{vLANE}")
    I(f"v_lshlrev_b32 v{vT+2}, 4, v{vT+2}")
    I(f"v_add_u32 v{vT+2}, {MISC}, v{vT+2}")
    I(f"s_lshl_b32 s{sT1}, s{sWAVE}, 2")
    I(f"v_add_u32 v{vT+3}, s{sT1}, v{vT+2}")
    I(f"ds_write_b32 v{vT+3}, v{vM} offset:{M_MX - MISC}")
    I(f"ds_write_b32 v{vT+3}, v{vL} offset:{M_LS - MISC}")
    v_loads(vpost[0])
    I(f"v_lshlrev_b32 v{tRW}, 3, v{vN_}")
    I(f"v_add_u32 v{tRW}, s{sLDSW}, v{tRW}")
    I(f"v_and_b32 v{vT+6}, 3, v{vLANE}")
    I(f"v_lshlrev_b32 v{vT+6}, 8, v{vT+6}")
    I(f"v_lshrrev_b32 v{vT+7}, 2, v{vLANE}")
    I(f"v_lshl_add_u32 v{vT+6}, v{vT+7}, 3, v{vT+6}")
    I(f"s_and_b32 s{sT1}, s{sWAVE}, 1")
    I(f"s_lshl_b32 s{sT1}, s{sT1}, 10")
    I(f"s_lshr_b32 s{sT2}, s{sWAVE}, 1")
    I(f"s_lshl_b32 s{sT2}, s{sT2}, 2")
    I(f"s_add_u32 s{sT1}, s{sT1}, s{sT2}")
    I(f"v_add_u32 v{tRR}, s{sT1}, v{vT+6}")
    I(f"v_add_u32 v{tRR2}, 65536, v{tRR}")
    I(f"s_lshl_b32 s{sT1}, s{sWAVE}, 9")
    I(f"v_lshlrev_b32 v{vT+6}, 3, v{vLANE}")
    I(f"v_add_u32 v{vT+6}, s{sT1}, v{vT+6}")
    I(f"s_lshl_b32 s{sT0}, s2, 11")
    I(f"s_add_u32 s{sT0}, s{sT0}, {ODOFF}")
    I(f"v_add_u32 v{tOD}, s{sT0}, v{vT+6}")
    I(f"s_lshl_b32 s{sT0}, s{sWAVE}, 3")
    I(f"s_add_u32 s{sT0}, s{sT0}, s{sHKV}")
    I(f"s_lshl_b32 s{sT1}, s{sT0}, 14")
    I(f"s_lshl_b32 s{sT2}, s{sB}, 9")
    I(f"s_add_u32 s{sT1}, s{sT1}, s{sT2}")
    I(f"s_add_u32 s{sT1}, s{sT1}, {ODOFF + 0x1000}")
    I(f"v_lshlrev_b32 v{vT+6}, 3, v{vLANE}")
    I(f"v_add_u32 v{tG1}, s{sT1}, v{vT+6}")
    I(f"v_add_u32 v{tG2}, 0x2000, v{tG1}")
    I(f"s_lshl_b32 s{sT0}, s{sT0}, 8")
    I(f"s_add_u32 s{sT0}, s{sT0}, {OSOFF}")
    I(f"v_and_b32 v{vT+6}, 31, v{vLANE}")
    I(f"v_lshlrev_b32 v{vT+6}, 3, v{vT+6}")
    I(f"v_add_u32 v{tGS}, s{sT0}, v{vT+6}")
    I(f"v_lshlrev_b32 v{vT+7}, 1, v{vLANE}")
    img_pos(tOI, vT+7, vT+6)
    I(f"s_lshl_b32 s{sT1}, s{sWAVE}, 8")
    I(f"s_add_u32 s{sT1}, s{sT1}, {OI}")
    I(f"v_add_u32 v{tOI}, s{sT1}, v{tOI}")
    I(f"s_lshl_b32 s{sT0}, s{sC}, 14")
    I(f"s_lshl_b32 s{sT1}, s{sWAVE}, 7")
    I(f"s_add_u32 s{sT0}, s{sT0}, s{sT1}")
    I(f"s_add_u32 s{sT0}, s{sT0}, {YOFF}")
    I(f"v_lshlrev_b32 v{vT+6}, 3, v{vN_}")
    I(f"v_add_u32 v{vT+6}, s{sT0}, v{vT+6}")
    I(f"s_lshl_b32 s{sT1}, s{sHKV}, 2")
    I(f"s_add_u32 s{sT1}, s{sT1}, s{sB}")
    I(f"s_lshl_b32 s{sT1}, s{sT1}, 9")
    I(f"v_lshl_add_u32 v{tYS}, v{vG_}, 17, v{vT+6}")
    I(f"v_add_u32 v{tYS}, s{sT1}, v{tYS}")
    I(f"s_lshl_b32 s{sT1}, s{sB}, 17")
    I(f"s_add_u32 s{sT1}, s{sT1}, 0x1000")
    I(f"v_lshl_add_u32 v{tYG}, v{vG_}, 9, v{vT+6}")
    I(f"v_add_u32 v{tYG}, s{sT1}, v{tYG}")
    I(f"v_add_u32 v{tYG2}, 0x2000, v{tYG}")
    I(f"v_lshlrev_b32 v{tOUT}, 1, v{vN_}")
    I(f"v_mov_b32 v{tPO+1}, s{sTAG}")
    I(f"v_mov_b32 v{tPY+1}, s{sTAG}")
    I(f"s_mul_i32 s{sOUTS}, s{sB}, 896")
    I(f"s_lshl_b32 s{sT1}, s{sC}, 7")
    I(f"s_add_u32 s{sOUTS}, s{sOUTS}, s{sT1}")
    I(f"s_lshl_b32 s{sT1}, s{sWAVE}, 5")
    I(f"s_add_u32 s{sOUTS}, s{sOUTS}, s{sT1}")
    vWB = vT + 9
    wimg_rd(vWB, vT+6, vT+7)
    I(f"s_lshl_b32 s{sT1}, s{sWAVE}, 5")
    I(f"v_xor_b32 v{vWB}, s{sT1}, v{vWB}")
    I(f"v_add_u32 v{vWB+1}, {W2I}, v{vWB}")
    I(f"v_add_u32 v{vWB}, {WOI}, v{vWB}")
    I(f"v_and_b32 v{vT+7}, 3, v{vLANE}")
    I(f"v_lshlrev_b32 v{vWB+2}, 8, v{vT+7}")
    I(f"v_lshl_add_u32 v{vWB+2}, v{vG_}, 4, v{vWB+2}")
    I(f"v_add_u32 v{vWB+2}, {OI}, v{vWB+2}")
    vHB = vT + 6
    I(f"v_lshlrev_b32 v{vHB}, 7, v{vT+7}")
    I(f"v_lshl_add_u32 v{vHB}, v{vG_}, 4, v{vHB}")
    I(f"v_add_u32 v{vHB}, {HI}, v{vHB}")
    if pretouch:
        vD = vKD
        I(f"s_cmp_eq_u32 s{sC}, 7")
        I("s_cbranch_scc1 L_nopt")
        I(f"global_load_dwordx2 v[{vD}:{vD+1}], v{tGS}, s[{sWS}:{sWS+1}] sc1")
        for k in range(8):
            a = tG1 if k < 4 else tG2
            I(f"global_load_dwordx2 v[{vD}:{vD+1}], v{a}, s[{sWS}:{sWS+1}] offset:{(k & 3)*2048 - 4096} sc1")
        if pretouch > 1:
            I(f"s_sub_u32 s{sT1}, 7, s{sB}")
            I(f"s_cmp_eq_u32 s{sS}, s{sT1}")
            I("s_cbranch_scc0 L_nopt")
            for k in range(8):
                a = tYG if k < 4 else tYG2
                I(f"global_load_dwordx2 v[{vD}:{vD+1}], v{a}, s[{sWS}:{sWS+1}] offset:{(k & 3)*2048 - 4096} sc1")
        G.L("L_nopt")
        G.vm_bound += 17
    def pv(beta, h):
        j0 = beta*16 + h*8
        G.vm_wait(vidx[j0 + 7])
        for c4 in range(4):
            src = []
            for q in range(8):
                f, b0 = v_reg(j0 + q)
                if f == "a":
                    t = vRD + 8*(c4 & 1) + q
                    I(f"v_accvgpr_read_b32 v{t}, a{b0 + c4}")
                    src.append(t)
                else:
                    src.append(b0 + c4)
            for e, sel in ((0, sSELLO), (1, sSELHI)):
                pt = vPT + 8*(c4 & 1) + 4*e
                for i in range(4):
                    I(f"v_perm_b32 v{pt+i}, v{src[2*i+1]}, v{src[2*i]}, s{sel}")
            for e in (0, 1):
                pt = vPT + 8*(c4 & 1) + 4*e
                acc = aACC + 4*(h*8 + 2*c4 + e)
                c = "0" if beta == 0 else f"a[{acc}:{acc+3}]"
                I(f"v_mfma_f32_16x16x32_bf16 a[{acc}:{acc+3}], v[{vP+4*beta}:{vP+4*beta+3}], v[{pt}:{pt+3}], {c}")
    pv(0, 0); v_loads(vpost[1])
    if not wlate: G.vm_wait(wl[0])
    I("s_waitcnt lgkmcnt(0)")
    stamp(14)
    I("s_barrier")
    stamp(15)
    tr("B2")
    vR = vRD
    I(f"ds_read_b128 v[{vR}:{vR+3}], v{vT+2} offset:{M_MX - MISC}")
    I(f"ds_read_b128 v[{vR+4}:{vR+7}], v{vT+2} offset:{M_LS - MISC}")
    if not glate:
        I(f"v_mov_b32 v{vT+7}, {M_G}")
        I(f"ds_read_b128 v[{vR+8}:{vR+11}], v{vT+7}")
    def ffn_reads():
        for s in range(2):
            I(f"ds_read_b64_tr_b16 a[{aW2+4*s}:{aW2+4*s+1}], v{vWB+1} offset:{s*4096}")
            I(f"ds_read_b64_tr_b16 a[{aW2+4*s+2}:{aW2+4*s+3}], v{vWB+1} offset:{s*4096+2048}")
            I(f"ds_read_b128 v[{vPT+4*s}:{vPT+4*s+3}], v{vHB} offset:{s*64}")
    if not wlate:
        ffn_reads()
        I("s_waitcnt lgkmcnt(6)")
    else:
        I("s_waitcnt lgkmcnt(0)")
    if not glate:
        for r in range(4):
            I(f"v_readfirstlane_b32 s{sG+r}, v{vR+8+r}")
    I(f"v_max3_f32 v{vM}, v{vR}, v{vR+1}, v{vR+2}")
    I(f"v_max_f32 v{vM}, v{vM}, v{vR+3}")
    for w in range(4):
        I(f"v_sub_f32 v{vR+w}, v{vR+w}, v{vM}")
    for w in range(4):
        I(f"v_exp_f32 v{vR+w}, v{vR+w}")
    I(f"v_mul_f32 v{vL}, v{vR}, v{vR+4}")
    for w in range(1, 4):
        I(f"v_fmac_f32 v{vL}, v{vR+w}, v{vR+4+w}")
    I(f"s_lshr_b32 s{sT1}, s{sWAVE}, 1")
    for w in range(4):
        I(f"v_readlane_b32 s{sF+w}, v{vR+w}, s{sT1}")
    I(f"v_and_b32 v{vT+7}, 2, v{vLANE}")
    I(f"v_cmp_eq_u32 vcc, 0, v{vT+7}")
    I(f"v_cndmask_b32 v{vR+12}, v{vL}, v{vM}, vcc")
    I(f"v_mov_b32 v{vR+13}, s{sTAG}")
    I(f"s_lshl_b32 s{sT1}, s2, 5")
    I(f"s_add_u32 s{sT1}, s{sT1}, {OSOFF}")
    I(f"v_lshlrev_b32 v{vT+7}, 3, v{vLANE}")
    I(f"v_add_u32 v{vT+7}, s{sT1}, v{vT+7}")
    I(f"s_cmp_eq_u32 s{sWAVE}, 0")
    I("s_cbranch_scc0 L_nostat")
    I("s_mov_b64 exec, 0xf")
    I(f"global_store_dwordx2 v{vT+7}, v[{vR+12}:{vR+13}], s[{sWS}:{sWS+1}] sc1")
    I("s_mov_b64 exec, -1")
    G.L("L_nostat")
    set_par()
    G.vm_bound += 1
    vYB, vYA = vT + 12, vT + 4
    def ffn_mfma_and_wo():
        I("s_waitcnt lgkmcnt(0)")
        for s in range(2):
            c = "0" if s == 0 else f"v[{vYB}:{vYB+3}]"
            I(f"v_mfma_f32_16x16x32_bf16 v[{vYB}:{vYB+3}], v[{vPT+4*s}:{vPT+4*s+3}], a[{aW2+4*s}:{aW2+4*s+3}], {c}")
        for s in range(4):
            I(f"ds_read_b64_tr_b16 a[{aWO+4*s}:{aWO+4*s+1}], v{vWB} offset:{s*4096}")
            I(f"ds_read_b64_tr_b16 a[{aWO+4*s+2}:{aWO+4*s+3}], v{vWB} offset:{s*4096+2048}")
    if not wlate: ffn_mfma_and_wo()
    v_loads(vpost[2])
    pv(0, 1); v_loads(vpost[3])
    pv(1, 0); v_loads(4); pv(1, 1); v_loads(64)
    if wlate: w_loads(6, win=False)
    if glate:
        for x_ in gate_loads(rX, rK, vKD): wl[0] = vm(x_)
    stamp(4)
    tr("allV_issued")
    def red_writes(lo):
        I("s_mov_b64 exec, 0xffff")
        for i in range(lo, lo + 8):
            I(f"ds_write_b64 v{tRW}, a[{aACC+4*i}:{aACC+4*i+1}] offset:{i*128}")
        I("s_mov_b64 exec, -1")
    pv(2, 0); pv(2, 1); pv(3, 0)
    red_writes(0)
    pv(3, 1)
    stamp(5)
    tr("pv_done")
    red_writes(8)
    I("s_waitcnt lgkmcnt(0)")
    I("s_barrier")
    vR = vRING
    for w in range(4):
        for e in range(2):
            I(f"ds_read_b32 v{vR+2*w+e}, v{tRR if w < 2 else tRR2} offset:{(w & 1)*32768 + e*128}")
    for w in range(4):
        I(f"s_waitcnt lgkmcnt({6-2*w})")
        for e in range(2):
            if w == 0: I(f"v_mul_f32 v{vR+8+e}, s{sF}, v{vR+e}")
            else: I(f"v_fmac_f32 v{vR+8+e}, s{sF+w}, v{vR+2*w+e}")
    I(f"v_cvt_pk_bf16_f32 v{tPO}, v{vR+8}, v{vR+9}")
    I(f"global_store_dwordx2 v{tOD}, v[{tPO}:{tPO+1}], s[{sWS}:{sWS+1}] sc1")
    stamp(6)
    tr("o_pub")
    I(f"s_cmp_eq_u32 s{sC}, 7")
    I("s_cbranch_scc1 L_fin")
    vO = vRING + 16
    vSt = vRING + 32
    def s_load():
        I(f"global_load_dwordx2 v[{vSt}:{vSt+1}], v{tGS}, s[{sWS}:{sWS+1}] sc1")
    def o_loads(base=None):
        base = vO if base is None else base
        for k in range(8):
            a = tG1 if k < 4 else tG2
            I(f"global_load_dwordx2 v[{base+2*k}:{base+2*k+1}], v{a}, s[{sWS}:{sWS+1}] offset:{(k & 3)*2048 - 4096} sc1")
    s_load()
    o_loads()
    if wlate:
        I("s_waitcnt vmcnt(10)")
        if glate:
            gate_compute(vKD, vRING + 48)
            I("s_waitcnt lgkmcnt(0)")
        I("s_barrier")
        if glate:
            I(f"v_mov_b32 v{vRING+48}, {M_G}")
            I(f"ds_read_b128 v[{vRING+52}:{vRING+55}], v{vRING+48}")
            I("s_waitcnt lgkmcnt(0)")
            for r in range(4):
                I(f"v_readfirstlane_b32 s{sG+r}, v{vRING+52+r}")
        ffn_reads()
        ffn_mfma_and_wo()
    I("s_waitcnt vmcnt(8)")
    poll("s", s_load, lambda: tagcheck([vSt+1]))
    vW0 = vSt + 2
    I(f"v_mov_b32_dpp v{vW0}, v{vSt} row_shr:2 row_mask:0xf bank_mask:0xf")
    I(f"v_mov_b32 v{vW0+1}, v{vW0}")
    for ror in (4, 8):
        I(f"v_max_f32_dpp v{vW0+1}, v{vW0+1}, v{vW0+1} row_ror:{ror} row_mask:0xf bank_mask:0xf")
    I(f"v_mov_b32 v{vW0+2}, v{vW0+1}")
    I(f"v_permlane16_swap_b32 v{vW0+1}, v{vW0+2}")
    I(f"v_max_f32 v{vW0+1}, v{vW0+1}, v{vW0+2}")
    I(f"v_sub_f32 v{vW0}, v{vW0}, v{vW0+1}")
    I(f"v_exp_f32 v{vW0}, v{vW0}")
    I(f"v_mul_f32 v{vW0+1}, v{vW0}, v{vSt}")
    for ror in (4, 8):
        I(f"v_add_f32_dpp v{vW0+1}, v{vW0+1}, v{vW0+1} row_ror:{ror} row_mask:0xf bank_mask:0xf")
    I(f"v_mov_b32 v{vW0+2}, v{vW0+1}")
    I(f"v_permlane16_swap_b32 v{vW0+1}, v{vW0+2}")
    I(f"v_add_f32 v{vW0+1}, v{vW0+1}, v{vW0+2}")
    I(f"v_rcp_f32 v{vW0+1}, v{vW0+1}")
    I(f"s_lshr_b32 s{sT1}, s{sB}, 1")
    I(f"s_add_u32 s{sT1}, s{sT1}, 2")
    I(f"v_mul_f32 v{vW0}, v{vW0}, v{vW0+1}")
    for k in range(8):
        I(f"v_readlane_b32 s{sWT+k}, v{vW0}, s{sT1}")
        if k < 7: I(f"s_add_u32 s{sT1}, s{sT1}, 4")
    I("s_waitcnt vmcnt(0)")
    stamp(16)
    if dpoll: poll2("o", o_loads, 8, [vO+2*k+1 for k in range(8)], [vO+96+2*k+1 for k in range(8)])
    else: poll("o", o_loads, lambda: tagcheck([vO+2*k+1 for k in range(8)]))
    stamp(17)
    tr("o_ok")
    vo0, vo1 = vW0+3, vW0+4
    for k in range(8):
        I(f"v_lshlrev_b32 v{vW0+5}, 16, v{vO+2*k}   ; async-ok")
        I(f"v_and_b32 v{vW0+6}, 0xffff0000, v{vO+2*k}   ; async-ok")
        if k == 0:
            I(f"v_mul_f32 v{vo0}, s{sWT}, v{vW0+5}")
            I(f"v_mul_f32 v{vo1}, s{sWT}, v{vW0+6}")
        else:
            I(f"v_fmac_f32 v{vo0}, s{sWT+k}, v{vW0+5}")
            I(f"v_fmac_f32 v{vo1}, s{sWT+k}, v{vW0+6}")
    I(f"v_cvt_pk_bf16_f32 v{vo0}, v{vo0}, v{vo1}")
    I(f"ds_write_b32 v{tOI}, v{vo0}")
    I("s_waitcnt lgkmcnt(0)")
    I("s_barrier")
    vOA = vRING + 64
    for s in range(4):
        I(f"ds_read_b128 v[{vOA+4*s}:{vOA+4*s+3}], v{vWB+2} offset:{s*64}")
    for s in range(4):
        I(f"s_waitcnt lgkmcnt({3-s})")
        c = "0" if s == 0 else f"v[{vYA}:{vYA+3}]"
        I(f"v_mfma_f32_16x16x32_bf16 v[{vYA}:{vYA+3}], v[{vOA+4*s}:{vOA+4*s+3}], a[{aWO+4*s}:{aWO+4*s+3}], {c}")
    vYY = vOA + 16
    for r in range(4):
        I(f"v_sub_f32 v{vYY+r}, v{vYA+r}, v{vYB+r}")
        I(f"v_fma_f32 v{vYY+r}, v{vYY+r}, s{sG+r}, v{vYB+r}")
    keep_group(vYY, 1)
    I(f"v_mov_b32 v{tPY}, v{vYY}")
    I(f"global_store_dwordx2 v{tYS}, v[{tPY}:{tPY+1}], s[{sWS}:{sWS+1}] sc1")
    stamp(18)
    tr("y_pub")
    I(f"s_sub_u32 s{sT1}, 7, s{sB}")
    I(f"s_cmp_eq_u32 s{sS}, s{sT1}")
    I("s_cbranch_scc0 L_fin")
    vY = vRING + 128 - 8*0
    def y_loads(base=None):
        base = vY if base is None else base
        for k in range(8):
            a = tYG if k < 4 else tYG2
            I(f"global_load_dwordx2 v[{base+2*k}:{base+2*k+1}], v{a}, s[{sWS}:{sWS+1}] offset:{(k & 3)*2048 - 4096} sc1")
    y_loads()
    I("s_waitcnt vmcnt(0)")
    if dpoll: poll2("y", y_loads, 8, [vY+2*k+1 for k in range(8)], [vY+16+2*k+1 for k in range(8)])
    else: poll("y", y_loads, lambda: tagcheck([vY+2*k+1 for k in range(8)]))
    vZ = vPT
    for k in range(4):
        I(f"v_add_f32 v{vZ+k}, v{vY+4*k}, v{vY+4*k+2}   ; async-ok")
    I(f"v_add_f32 v{vZ}, v{vZ}, v{vZ+1}")
    I(f"v_add_f32 v{vZ+2}, v{vZ+2}, v{vZ+3}")
    I(f"v_add_f32 v{vZ}, v{vZ}, v{vZ+2}")
    xsum(vZ, vZ+1)
    I(f"v_cvt_pk_bf16_f32 v{vZ}, v{vZ}, v{vZ}")
    I("s_mov_b64 exec, 0xffff")
    I(f"buffer_store_short v{vZ}, v{tOUT}, s[{rOUT}:{rOUT+3}], s{sOUTS} offen")
    I("s_cmp_eq_u32 s2, 15")
    I("s_cbranch_scc0 L_fin")
    I(f"s_cmp_eq_u32 s{sWAVE}, 0")
    I("s_cbranch_scc0 L_fin")
    I(f"v_mov_b32 v{vZ+2}, s{sTAG}")
    I(f"v_mov_b32 v{vZ+3}, {EPOCH}")
    I("s_mov_b64 exec, 1")
    I(f"global_store_dword v{vZ+3}, v{vZ+2}, s[{sWS}:{sWS+1}] sc1")
    G.L("L_fin")
    if trace:
        I("s_mov_b64 exec, -1")
        tr("end")
        I(f"s_lshl_b32 s{sT0}, s2, 2")
        I(f"s_add_u32 s{sT0}, s{sT0}, s{sWAVE}")
        I(f"s_lshl_b32 s{sT0}, s{sT0}, 8")
        I(f"s_add_u32 s{sT0}, s{sT0}, {STAMP_OFF}")
        I(f"v_lshlrev_b32 v{vT}, 2, v{vLANE}")
        I(f"v_add_u32 v{vT}, s{sT0}, v{vT}")
        I(f"global_store_dword v{vT}, v{vTR}, s[{sWS}:{sWS+1}]")
    if stamps:
        I("s_mov_b64 exec, -1")
        stamp(7)
        I(f"s_cmp_eq_u32 s{sWAVE}, {swave}")
        I("s_cbranch_scc0 L_end")
        if dbgwg is not None:
            for j, w in enumerate(dbgwg):
                I(f"s_cmp_eq_u32 s2, {w}")
                I(f"s_cbranch_scc0 L_dbg{j}")
                I(f"v_mov_b32 v{vT}, 0")
                I("s_mov_b64 exec, 1")
                for k in range(8):
                    I(f"v_mov_b32 v{vT+2}, s{sSTAMP+2*k}")
                    I(f"global_store_dword v{vT}, v{vT+2}, s[{sDBG}:{sDBG+1}] offset:{32*j + 4*k}")
                G.L(f"L_dbg{j}")
            I("s_endpgm")
        I(f"s_mul_i32 s{sT0}, s2, 64")
        I(f"s_add_u32 s{sT0}, s{sT0}, {STAMP_OFF}")
        I(f"v_mov_b32 v{vT}, s{sT0}")
        I("s_mov_b64 exec, 1")
        for k in range(8):
            I(f"v_mov_b32 v{vT+2}, s{sSTAMP+2*k}")
            I(f"v_mov_b32 v{vT+3}, s{sSTAMP+2*k+1}")
            I(f"global_store_dwordx2 v{vT}, v[{vT+2}:{vT+3}], s[{sWS}:{sWS+1}] offset:{8*k}")
    G.L("L_end")
    I("s_endpgm")
    G.L("L_code_end")
    return G

HEADER = open("gated_mix__gqa_block_cached__dense_activation_relu__decode.s.ref").read().split("; Override launch")[0]

def emit(path, **kw):
    G = gen(**kw)
    for p in check_async(G.lines): print("ASYNC:", p)
    body, nn = G.text()
    src = HEADER + f"""; Override launch geometry by editing the next line (default: block=256,
; grid=ceil(out_elems/256), lds=0). Harness parses it; keep it on one line.
; @launch grid=(256,1,1) block=(256,1,1) lds={LDS_BYTES}
.amdgcn_target "amdgcn-amd-amdhsa--gfx950"
.text
.globl {NAME}
.p2align 8
.type {NAME},@function
{NAME}:
{body}
.section .rodata,"a"
.p2align 6
.amdhsa_kernel {NAME}
  .amdhsa_next_free_vgpr 512
  .amdhsa_next_free_sgpr 102
  .amdhsa_accum_offset 256
  .amdhsa_group_segment_fixed_size 0
  .amdhsa_kernarg_size 96
  .amdhsa_user_sgpr_count 2
  .amdhsa_user_sgpr_kernarg_segment_ptr 1
  .amdhsa_system_sgpr_workgroup_id_x 1
.end_amdhsa_kernel
"""
    open(path, "w").write(src)
    if G.trl: open(path.replace(".s", ".labels"), "w").write("\n".join(G.trl))
    return nn

if __name__ == "__main__":
    out = sys.argv[1] if len(sys.argv) > 1 else "k.s"
    kw = eval("dict(" + (sys.argv[2] if len(sys.argv) > 2 else "") + ")")
    print("nops inserted:", emit(out, **kw))
```
